```python
import torch

def _softmax(x, axis=-1):
    return torch.softmax(x, dim=axis)

def _gelu(x):
    return torch.nn.functional.gelu(x, approximate='tanh')

def _silu(x):
    return torch.nn.functional.silu(x)

def _sigmoid(x):
    return torch.sigmoid(x)

def _layernorm(x, axis=-1, eps=1e-05):
    m = x.mean(dim=axis, keepdim=True)
    v = x.var(dim=axis, keepdim=True, unbiased=False)
    return (x - m) / torch.sqrt(v + eps)

def _scatter_add(tgt, idx, src, axis=0):
    return tgt.clone().index_add_(axis, idx, src)

def _segment_sum(src, seg, n):
    out = torch.zeros((n,) + src.shape[1:], dtype=src.dtype)
    return out.index_add_(0, seg, src)

def _pad(x, pw):
    flat = tuple((v for pair in reversed(pw) for v in pair))
    return torch.nn.functional.pad(x, flat)
kernel_name = 'adaLN_cond__sliding_block_cached__moe_arch_mod__decode'

def setup_inputs():

    _w = lambda a: (lambda t: t.to(torch.bfloat16) if t.is_floating_point() else t)(torch.as_tensor(a))

    def _A_setup():
        B, Sq, D = (8, 1, 576)
        Hq, Hkv, Sk, Dh = (32, 16, 8192, 128)
        assert Hq % Hkv == 0, (Hq, Hkv)
        return {'x': _w((lambda *s: torch.randn(*s, dtype=torch.bfloat16) * 0.1)(B, Sq, D)), 'k_cache': _w((lambda *s: torch.randn(*s, dtype=torch.bfloat16) * 0.8)(B, Hkv, Sk, Dh)), 'v_cache': _w((lambda *s: torch.randn(*s, dtype=torch.bfloat16) * 0.8)(B, Hkv, Sk, Dh)), 'wq': _w((lambda *s: torch.randn(*s, dtype=torch.bfloat16) * 0.8)(D, Hq * Dh) * D ** (-0.5)), 'wo': _w((lambda *s: torch.randn(*s, dtype=torch.bfloat16) * 0.8)(Hq * Dh, D) * (Hq * Dh) ** (-0.5))}
    _A_in = _A_setup()

    def _B_setup():
        B, S, D, F, C = (8, 1, 576, 4608, 1)
        return {'x': _w((lambda *s: torch.randn(*s, dtype=torch.bfloat16) * 0.1)(B, S, D)), 'w_r': _w((lambda *s: torch.randn(*s, dtype=torch.bfloat16) * 0.2)(D)), 'w_gate': _w((lambda *s: torch.randn(*s, dtype=torch.bfloat16) * 0.1)(D, F)), 'w_up': _w((lambda *s: torch.randn(*s, dtype=torch.bfloat16) * 0.1)(D, F)), 'w_down': _w((lambda *s: torch.randn(*s, dtype=torch.bfloat16) * 0.1)(F, D))}
    _B_in = _B_setup()
    return {'A_x': _A_in['x'], 'A_k_cache': _A_in['k_cache'], 'A_v_cache': _A_in['v_cache'], 'A_wq': _A_in['wq'], 'A_wo': _A_in['wo'], 'B_x': _B_in['x'], 'B_w_r': _B_in['w_r'], 'B_w_gate': _B_in['w_gate'], 'B_w_up': _B_in['w_up'], 'B_w_down': _B_in['w_down'], 'c': _w((lambda *s: torch.randn(*s, dtype=torch.bfloat16) * 0.4)(8, 576) * 8.0), 'w_mod': _w((lambda *s: torch.randn(*s, dtype=torch.bfloat16) * 0.4)(576, 6 * 576) * 576 ** (-0.5) * 8.0)}

def reference(A_x, A_k_cache, A_v_cache, A_wq, A_wo, B_x, B_w_r, B_w_gate, B_w_up, B_w_down, c, w_mod):

    def _A_ref(x, k_cache, v_cache, wq, wo):
        B, Sq, D = x.shape
        Hq, Dh = (32, 128)
        Hkv, Sk = (k_cache.shape[1], k_cache.shape[2])
        W = min(4096, max(256, Sk // 4))
        rep = Hq // Hkv
        q = (lambda x, *d: x.permute(*d))((x @ wq).reshape(B, Sq, Hq, Dh), 0, 2, 1, 3)
        k = (lambda x, n, axis: torch.repeat_interleave(x, n, dim=axis))(k_cache[:, :, Sk - W:, :], rep, axis=1)
        v = (lambda x, n, axis: torch.repeat_interleave(x, n, dim=axis))(v_cache[:, :, Sk - W:, :], rep, axis=1)
        scores = torch.einsum('bhqd,bhkd->bhqk', q, k) * Dh ** (-0.5)
        p = _softmax(scores, axis=-1)
        o = torch.einsum('bhqk,bhkd->bhqd', p, v)
        return (lambda x, *d: x.permute(*d))(o, 0, 2, 1, 3).reshape(B, Sq, Hq * Dh) @ wo

    def _B_ref(x, w_r, w_gate, w_up, w_down):
        B, S, D = x.shape
        C = 1
        r = x @ w_r
        idx = torch.argsort(-r, axis=-1)[:, :C]
        idx_e = (lambda x, n, axis: torch.repeat_interleave(x, n, dim=axis))(idx.reshape(B, C, 1), D, axis=2)
        x_sel = (lambda x, i, axis: torch.take_along_dim(x, i, dim=axis))(x, idx_e, axis=1)
        g = _silu(x_sel @ w_gate)
        u = x_sel @ w_up
        y = g * u @ w_down
        r_sel = _sigmoid((lambda x, i, axis: torch.take_along_dim(x, i, dim=axis))(r, idx, axis=1))
        y = y * r_sel.reshape(B, C, 1)
        b_off = (torch.arange(B) * S).reshape(B, 1)
        flat_idx = (idx + b_off).reshape(B * C)
        zero = (x * 0.0).reshape(B * S, D)
        upd = _scatter_add(zero, flat_idx, y.reshape(B * C, D), axis=0)
        return x + upd.reshape(B, S, D)
    x = A_x
    mod = (_silu(c) @ w_mod).reshape(c.shape[0], 6, 1, -1)
    sa, ca, ga, sb, cb, gb = (mod[:, 0].clone(), mod[:, 1].clone(), mod[:, 2].clone(), mod[:, 3].clone(), mod[:, 4].clone(), mod[:, 5].clone())
    h = _layernorm(x, axis=-1) * (1 + ca) + sa
    x = x + ga * _A_ref(h, A_k_cache, A_v_cache, A_wq, A_wo)
    h = _layernorm(x, axis=-1) * (1 + cb) + sb
    x = x + gb * _B_ref(h, B_w_r, B_w_gate, B_w_up, B_w_down)
    return x
```

```python
import re
NAME = "adaLN_cond__sliding_block_cached__moe_arch_mod__decode"

HEADER_COMMENT = """; Kernarg layout for this problem (120 bytes, ptrs only, base s[0:1]):
;   offset  16: d_in[2] A_v_cache  shape=(8, 16, 8192, 128) dtype=bfloat16 strides=(33554432, 2097152, 256, 2) contiguous=True
"""


def vr(a, n=1):
    return "v%d" % a if n == 1 else "v[%d:%d]" % (a, a + n - 1)


def sr(a, n=1):
    return "s%d" % a if n == 1 else "s[%d:%d]" % (a, a + n - 1)


TRANS = ("v_exp_f32", "v_log_f32", "v_rcp_f32", "v_rsq_f32", "v_sqrt_f32", "v_sin_f32", "v_cos_f32", "v_rcp_iflag_f32")
_REG = re.compile(r"^(-|\|)*([vsa])(\d+)\|?$")
_RNG = re.compile(r"^(-|\|)*([vsa])\[(\d+):(\d+)\]\|?$")


def regs_of(op):
    op = op.strip()
    m = _REG.match(op)
    if m:
        return [(m.group(2), int(m.group(3)))]
    m = _RNG.match(op)
    if m:
        return [(m.group(2), i) for i in range(int(m.group(3)), int(m.group(4)) + 1)]
    if op == "vcc":
        return [("s", 106), ("s", 107)]
    if op == "vcc_lo":
        return [("s", 106)]
    if op == "vcc_hi":
        return [("s", 107)]
    if op == "exec":
        return [("s", 126), ("s", 127)]
    if op == "m0":
        return [("s", 124)]
    return []


def split_ops(rest):
    ops, cur, depth = [], "", 0
    for ch in rest:
        if ch == "[":
            depth += 1
        if ch == "]":
            depth -= 1
        if ch == "," and depth == 0:
            ops.append(cur.strip())
            cur = ""
        else:
            cur += ch
    mods = ""
    cur = cur.strip()
    if cur:
        depth = 0
        idx = len(cur)
        for i, ch in enumerate(cur):
            if ch == "[":
                depth += 1
            if ch == "]":
                depth -= 1
            if ch in " \t" and depth == 0:
                idx = i
                break
        ops.append(cur[:idx])
        mods = cur[idx:].strip()
    return ops, mods


class Hazard:
    def __init__(self):
        self.t = 0
        self.valu_w = {}
        self.trans_w = {}
        self.opsel_w = {}
        self.mfma_w = {}
        self.mfma_c = {}
        self.store_d = {}
        self.vs_w = {}
        self.dl_w = {}
        self.m0_w = -100
        self.cmpx_w = -100

    def pending(self):
        need = self.t
        for d, ws in ((self.valu_w, 2), (self.trans_w, 1), (self.opsel_w, 1), (self.store_d, 2), (self.vs_w, 5)):
            for k, t in d.items():
                need = max(need, t + ws + 1)
        for k, (t, b, s, p) in self.mfma_w.items():
            need = max(need, t + {2: 5, 4: 8, 8: 12, 16: 20}[p] + 1)
        for k, (t, p) in self.mfma_c.items():
            need = max(need, t + {2: 1, 4: 3, 8: 7, 16: 15}[p] + 1)
        for k, (t, o) in self.dl_w.items():
            need = max(need, t + 4)
        need = max(need, self.m0_w + 2, self.cmpx_w + 6)
        return need - self.t

    def process(self, line):
        txt = line.split(";")[0].strip()
        if not txt:
            return 0
        parts = txt.split(None, 1)
        opc = parts[0]
        rest = parts[1] if len(parts) > 1 else ""
        ops, mods = split_ops(rest)
        need = self.t
        def req(t, ws):
            nonlocal need
            need = max(need, t + ws + 1)
        base = opc.replace("_e32", "").replace("_e64", "").replace("_dpp", "").replace("_sdwa", "")
        is_mfma = base.startswith(("v_mfma", "v_smfmac"))
        is_valu = base.startswith("v_") and not is_mfma
        is_load = base.startswith(("buffer_load", "global_load", "ds_read", "ds_bpermute", "ds_permute", "ds_swizzle")) or (base.startswith("ds_") and "_rtn" in base)
        is_store = base.startswith(("buffer_store", "global_store", "ds_write")) or (base.startswith("ds_") and not is_load)
        is_atomic = base.startswith(("buffer_atomic", "global_atomic"))
        is_vmem = base.startswith(("buffer_", "global_"))
        is_mem = is_load or is_store or is_atomic
        dst, src = [], []
        if opc == "s_nop":
            n = int(ops[0], 0) + 1
            self.t += n
            return 0
        if base.startswith(("s_branch", "s_cbranch", "s_endpgm", "s_setpc", "s_swappc")):
            pad = self.pending() if not base.startswith("s_endpgm") else 0
            self.t += pad + 1
            return pad
        if is_mfma:
            dst = regs_of(ops[0]); A = regs_of(ops[1]); B = regs_of(ops[2]); C = regs_of(ops[3])
            if base.startswith("v_smfmac"):
                B, C = B + C, list(dst)
            passes = 4 if "16x16" in base else (8 if "32x32" in base else 2)
            req(self.cmpx_w, 4)
            for r in A + B + C:
                if r in self.valu_w: req(self.valu_w[r], 2)
            for r in A + B + C + dst:
                if r in self.dl_w: req(self.dl_w[r][0], 3)
            for r in A + B:
                if r in self.mfma_w:
                    t, b, s, p = self.mfma_w[r]; req(t, {2: 5, 4: 8, 8: 12, 16: 20}[p])
            for r in C:
                if r in self.mfma_w:
                    t, b, s, p = self.mfma_w[r]
                    if b == C[0] and s == len(C) and p == passes:
                        req(t, 2 if p == 2 else 0)
                    else:
                        req(t, {2: 4, 4: 6, 8: 10, 16: 18}[p])
            for r in dst:
                if r in self.mfma_w and r not in C:
                    t, b, s, p = self.mfma_w[r]; req(t, {2: 5, 4: 8, 8: 12, 16: 20}[p])
                if r in self.store_d: req(self.store_d[r], 2)
            pad = need - self.t
            self.t = need
            for r in dst:
                self.mfma_w[r] = (self.t, dst[0], len(dst), passes)
                self.valu_w.pop(r, None); self.trans_w.pop(r, None)
            for r in C:
                self.mfma_c[r] = (self.t, passes)
            self.t += 1
            return pad
        if is_valu:
            sdst = []
            if base.startswith("v_cmp"):
                sdst = regs_of(ops[0]); src = sum((regs_of(o) for o in ops[1:]), [])
                if base.startswith("v_cmpx"):
                    sdst = sdst + regs_of("exec")
            elif base in ("v_readfirstlane_b32", "v_readlane_b32"):
                sdst = regs_of(ops[0]); src = sum((regs_of(o) for o in ops[1:]), [])
                for r in regs_of(ops[1]):
                    if r in self.valu_w: req(self.valu_w[r], 1)
                if base == "v_readlane_b32":
                    for r in regs_of(ops[2]):
                        if r in self.vs_w: req(self.vs_w[r], 4)
            elif base.startswith("v_permlane") or base == "v_swap_b32":
                dst = regs_of(ops[0]) + regs_of(ops[1]); src = list(dst)
                if base.startswith("v_permlane"):
                    for r in src:
                        if r in self.valu_w: req(self.valu_w[r], 2)
            elif base in ("v_add_co_u32", "v_sub_co_u32", "v_addc_co_u32", "v_subb_co_u32", "v_div_scale_f32", "v_subrev_co_u32", "v_mad_u64_u32"):
                dst = regs_of(ops[0]); sdst = regs_of(ops[1]); src = sum((regs_of(o) for o in ops[2:]), [])
            elif base == "v_nop":
                pass
            else:
                dst = regs_of(ops[0]); src = sum((regs_of(o) for o in ops[1:]), [])
                if base.startswith(("v_fmac", "v_mac", "v_dot2c", "v_pk_fmac", "v_writelane")):
                    src = src + dst
                if base == "v_div_fmas_f32":
                    for r in regs_of("vcc"):
                        if r in self.vs_w: req(self.vs_w[r], 4)
            is_dpp = ("quad_perm" in mods or "row_" in mods or "wave_" in mods)
            is_trans = base in TRANS
            if is_dpp or base.startswith(("v_permlane", "v_readlane", "v_readfirstlane", "v_writelane")):
                req(self.cmpx_w, 5)
            is_dl = base.startswith("v_dot")
            for r in set(src + dst):
                if r in self.dl_w:
                    t, o = self.dl_w[r]
                    ab = regs_of(ops[1]) + regs_of(ops[2]) if is_dl else []
                    if not (is_dl and o == base and r not in ab):
                        req(t, 3)
            for r in src:
                if r[0] == "s" and r in self.vs_w: req(self.vs_w[r], 2)
                if r[0] != "s":
                    if is_dpp and r in self.valu_w: req(self.valu_w[r], 2)
                    if r in self.trans_w: req(self.trans_w[r], 1)
                    if r in self.opsel_w: req(self.opsel_w[r], 1)
                    if r in self.mfma_w:
                        t, b, s, p = self.mfma_w[r]; req(t, {2: 5, 4: 8, 8: 12, 16: 20}[p])
            if is_dpp:
                for r in dst:
                    if r in self.valu_w: req(self.valu_w[r], 2)
            for r in dst:
                if r in self.mfma_w:
                    t, b, s, p = self.mfma_w[r]; req(t, {2: 5, 4: 8, 8: 12, 16: 20}[p])
                if r in self.mfma_c:
                    t, p = self.mfma_c[r]; req(t, {2: 1, 4: 3, 8: 7, 16: 15}[p])
                if r in self.store_d: req(self.store_d[r], 2)
                if r in self.opsel_w: req(self.opsel_w[r], 1)
            pad = need - self.t
            self.t = need
            for r in dst:
                self.valu_w[r] = self.t
                self.mfma_w.pop(r, None)
                if is_trans: self.trans_w[r] = self.t
                else: self.trans_w.pop(r, None)
                if is_dl: self.dl_w[r] = (self.t, base)
                else: self.dl_w.pop(r, None)
                if "op_sel" in mods or "dst_sel" in mods or "sdwa" in opc: self.opsel_w[r] = self.t
                else: self.opsel_w.pop(r, None)
            for r in sdst:
                self.vs_w[r] = self.t
            if base.startswith("v_cmpx"):
                self.cmpx_w = self.t
            self.t += 1
            return pad
        if is_mem:
            lds_dma = is_vmem and (" lds" in (" " + mods) or "_lds_" in base)
            data = []
            if is_load and not lds_dma:
                dst = regs_of(ops[0]); src = sum((regs_of(o) for o in ops[1:]), [])
            else:
                src = sum((regs_of(o) for o in ops), [])
                if base.startswith(("buffer_store", "buffer_atomic")): data = regs_of(ops[0])
                elif base.startswith(("global_store",)): data = regs_of(ops[1])
                elif base.startswith("global_atomic"):
                    if "sc0" in mods or "glc" in mods:
                        dst = regs_of(ops[0]); data = regs_of(ops[2])
                    else:
                        data = regs_of(ops[1])
            if lds_dma: req(self.m0_w, 1)
            for r in src:
                if r[0] == "s" and r in self.vs_w and is_vmem: req(self.vs_w[r], 5)
                if r[0] != "s":
                    if r in self.mfma_w:
                        t, b, s, p = self.mfma_w[r]; req(t, {2: 5, 4: 8, 8: 12, 16: 20}[p])
                    if r in self.trans_w: req(self.trans_w[r], 1)
                    if r in self.dl_w: req(self.dl_w[r][0], 3)
            for r in dst:
                if r in self.mfma_w:
                    t, b, s, p = self.mfma_w[r]; req(t, {2: 5, 4: 8, 8: 12, 16: 20}[p])
                if r in self.mfma_c:
                    t, p = self.mfma_c[r]; req(t, {2: 1, 4: 3, 8: 7, 16: 15}[p])
                if r in self.store_d: req(self.store_d[r], 1)
                if r in self.dl_w: req(self.dl_w[r][0], 3)
            pad = need - self.t
            self.t = need
            for r in dst:
                self.valu_w.pop(r, None); self.mfma_w.pop(r, None); self.trans_w.pop(r, None)
            if len(data) >= 3:
                for r in data: self.store_d[r] = self.t
            self.t += 1
            return pad
        if base.startswith("s_") and ops:
            d = regs_of(ops[0])
            if not base.startswith(("s_cmp", "s_waitcnt", "s_sleep", "s_setprio", "s_barrier", "s_bitcmp")):
                for r in d:
                    self.vs_w.pop(r, None)
                    if r == ("s", 124): self.m0_w = self.t
        self.t += 1
        return 0


class Asm:
    def __init__(self):
        self.lines = []
        self.nlab = 0
        self.hz = Hazard()

    def __call__(self, s, *args):
        if args:
            s = s % args
        for l in s.split("\n"):
            l = l.strip()
            if l:
                pad = self.hz.process(l)
                while pad > 0:
                    k = min(pad, 16)
                    self.lines.append("    s_nop %d" % (k - 1))
                    pad -= k
                self.lines.append("    " + l)

    def label(self, name):
        self.lines.append(name + ":")

    def newlabel(self, stem="L"):
        self.nlab += 1
        return ".%s_%d" % (stem, self.nlab)

    def comment(self, s):
        self.lines.append("    ; " + s)

    def nop(self, n):
        while n > 0:
            k = min(n, 16)
            self("s_nop %d" % (k - 1))
            n -= k

    def srd(self, dst, ptr, nbytes):
        self("s_mov_b32 s%d, s%d" % (dst, ptr))
        self("s_and_b32 s%d, s%d, 0xffff" % (dst + 1, ptr + 1))
        self("s_mov_b32 s%d, 0x%x" % (dst + 2, nbytes))
        self("s_mov_b32 s%d, 0x00020000" % (dst + 3))

    def text(self):
        return "\n".join(self.lines) + "\n"


def single_kernel_file(body, grid, block, lds, nvgpr, accum_offset=None, nsgpr=102, page=0):
    if accum_offset is None:
        accum_offset = (nvgpr + 3) // 4 * 4
    k = NAME + "_kernel"
    s = HEADER_COMMENT
    s += "; @launch grid=(%d,1,1) block=(%d,1,1) lds=%d\n" % (grid, block, lds)
    s += '.amdgcn_target "amdgcn-amd-amdhsa--gfx950"\n.text\n%s.globl %s\n.p2align 8\n.type %s,@function\n%s:\n' % (".p2align 12\n" if page else "", k, k, k)
    s += body
    s += "s_endpgm\n"
    s += '.section .rodata,"a"\n.p2align 6\n.amdhsa_kernel %s\n' % k
    s += "  .amdhsa_next_free_vgpr %d\n  .amdhsa_next_free_sgpr %d\n  .amdhsa_accum_offset %d\n" % (nvgpr, nsgpr, accum_offset)
    s += "  .amdhsa_group_segment_fixed_size 0\n  .amdhsa_kernarg_size 120\n  .amdhsa_user_sgpr_count 2\n"
    s += "  .amdhsa_user_sgpr_kernarg_segment_ptr 1\n  .amdhsa_system_sgpr_workgroup_id_x 1\n.end_amdhsa_kernel\n"
    return s
```

```python
import sys
sys.path.insert(0, "gen")
from asmlib import *

REP = 18432
MG = 0x1000
QG = 0x70000
MLG = 0x430000
OG = 0xA0000
AG = 0xE0000
XG = 0x170000
CG = 0x1A0000
PCG = 0x800
XT = 0x480000
CAL = 0x4A0000
ETG = 0x4A1000
TFG = 0x4A2000
TCG = 0x4A4000
GSG = 0x490000
FAST = 0x800000
STAMP_OFF = 0x20000000

IMG = 73728
L_IM0 = 0
L_IM1 = IMG
L_WO = 0
L_GATE = 0
L_UP = IMG
L_DOWN = 0
OPITCH = 528
L_OI = 131072
APITCH = 1312
L_ACT = 147456
L_OP = L_ACT
L_PUB = 157952
L_ML = 159104
L_Q = L_ML + 256
LDS_SIZE = 159104

P_X, P_K, P_V, P_WQ, P_WO, P_BX, P_WR, P_WG, P_WU, P_WD, P_C, P_WM, P_OUT, P_DBG, P_WS = [4 + 2 * i for i in range(15)]
S_TAG, S_BUD = 34, 35
R_WS, R_K, R_V, R_A, R_B = 36, 40, 44, 48, 52
T0 = 56
S_X, S_R, S_B, S_HKV, S_HALF, S_KV = 64, 65, 66, 67, 68, 69
S_STAMP = 70
S_LO, S_HI = 94, 95
S_DRY = 94
S_ODD = 96
S_NL = 98
S_E0, S_E1, S_E2 = 99, 100, 101
NS = 12
S_NOW, S_T0 = P_BX, P_DBG

LOG2E = "0x3fb8aa3b"
SCALE = "0x3db504f3"
QP1032 = "quad_perm:[1,0,3,2] row_mask:0xf bank_mask:0xf"
DM = "row_mask:0xf bank_mask:0xf"

VK, VV = 1, 2
VR8, VR4, VG8 = 3, 4, 5
VDMA = 6
QR = 16
KV = 32
VP = 160
NVP = 24
VPC = VG8


def fhex(x):
    import struct
    return "0x%08x" % struct.unpack("<I", struct.pack("<f", x))[0]


class VM:
    def __init__(self, a):
        self.a = a
        self.q = []

    def issue(self, tag):
        self.total = getattr(self, "total", 0) + 1
        self.q.append(tag)
        assert len(self.q) <= 63, "vmcnt overflow"

    def has(self, tag):
        return tag in self.q

    def wait(self, tag):
        if tag not in self.q:
            return
        idx = max(i for i, t in enumerate(self.q) if t == tag)
        self.a("s_waitcnt vmcnt(%d)" % (len(self.q) - 1 - idx))
        self.q = self.q[idx + 1:]

    def window(self, w):
        if w >= 20:
            self.acc = getattr(self, "acc", 0) + w % 10
            w = w // 10
            if self.acc >= 10:
                self.acc -= 10
                w += 1
        n = self.cnt_for(w - 1)
        if n < len(self.q):
            self.a("s_waitcnt vmcnt(%d)" % n)
            self.q = self.q[len(self.q) - n:]

    def cnt_for(self, t):
        n = real = 0
        for e in reversed(self.q):
            if e not in ("pc", "ps", "gs", "xt"):
                if real == t:
                    break
                real += 1
            n += 1
        return n

    def wait_all(self):
        self.a("s_waitcnt vmcnt(0)")
        self.q = []


class Gen:
    def __init__(self, **kw):
        self.o = dict(stamps=0, s01=0, xe=0, pw=0, ag2=0, tc=0, r21=0, tg=0, tgs=0, es=0, dg=0, inl="", lq=0, xtp=30, sp=0, oa=0, ld=0, ip=0, sm=0, sv=0, qkv=4, agf="sc1", gain=0, agt=0, r0=0, r20=0, pv=32, wolp=0, wol=0, kp2=0, cl=0, mo=0, hn=9, hb=0, qsh=0, rm=0, sk=0, ms=0, mp=0, mix=0, dt=0, vt=0, km1=0, wf=0, et_n=0, mlc=0, ql=0, qs=0, exp=0, nu3=0, lwd=0, lw=4, lg3=2, lga=2, tw=0, tw1=6, tw2=44, twv=0, hp="", hpf="nt", lgu=99, lg=0, ngn=0, lgb=1, bal=0, page=0, otouch=0, woff=0, dne=0, tch=0, nosl=0, pnt=0, rc=4, rl=4, mls=7, b3c=0, b3n=0, b3p=0, b3q=48, b3m=3, apx="", aps_q="", aps_a="", apl="", apl0=0, et=0, et_bc=12, etw=4, et0=0, jx=0, ap=0, apw=6, apt=1680, apr=345, ap1=50, ap2=70, ap3=1, apw2=0, ap4=150, ap_bc=0, apo=-1, cs=0, crd=42, cru=4, cal0=0, cg=10, clo=-100, chi=200, t_a=0, t_q=0, t_q3=0, t_m=0, t_m0=0, t_bc=0, t_bc3=0, aps_n="", aps_m="", aps_bc="", apsp=0, gs="", gsn=1, gsk=0, gsl=2, gst=0, dbgs=0, fixend=0, osc=0, dirty=0, kpre=0, kprec=1, dw=0, prio=0, qil=0, qpos=0, w_q=4, w_bc=4, w_n=4, qa_bc=40, qc_bc=44, qa_n=30, qc_n=33, mla=22, km2=8, xsleep=0, rsleep=0, w_late=0, bc_pos=99, wo_pos=1, psleep=1, km=4, kq0=2, kqa=8, kqc=10, late=0, il=1, w_e=4, kmr=10, kst_n=26, w_m=4, qa_m=31, qc_m=34, wo_step=2, g_pos=2, g_step=3, nup=0, fast=1, dry=0, pace=0, pa=430, pb=2150, pthr=1, p0=12, pd_bc=0, pd_n=0, pd_m=0, pthr2=0, pm2=6, dnearly=0, plag=4, pm=2, pstep=4, pk=8, pk2=8, spat=0, tpace=0, tm2=60, tp0=6, asleep=0, r2sleep=0, pend=63, d_m=50, d_m0=50, d_q=50, d_q3=50, d_a=50, d_bc=0, d_bc3=0, opn_p=99, opn_w=8, upl=0, opn_bc=99, slow64=0, pk1=0, pk2r=0, pgap=6, pkx=0, pka=0, lgap=2, cp1=0, cp2=0, pairs=0, xt=0, pf=0, pf_up=9, pf_g=128, pf_dn=0, tlbw=0, pf_bar=1, eg=0, n1=4, n2=5, modin=0, dnfirst=0, rprep=0, rin=0, modfree=0, u03=0, ng=9, dnx=0, rot=0, rota=1, rotb=0, rsh=0, lm="10,11,12,18", cm="13,14,15,16,17", ko="0,1,2,3,4", wb=5, dodd=0, dhi=0, W_m=34, W_m0=31, W_q=35, W_q3=38, W_a=33, W_bc=38, W_bc3=50)
        self.o.update(kw)
        for g in ("MG", "QG", "MLG", "OG", "AG", "XG", "CG", "XT", "CAL", "ETG", "GSG"):
            globals()[g] += int(self.o["woff"]) << 20
        self.a = Asm()
        self.sites = {}
        self.lm = [int(x) for x in self.o["lm"].split(",")]
        self.cm = [int(x) for x in self.o["cm"].split(",")]
        self.ko = [int(x) for x in self.o["ko"].split(",")]
        assert sorted(self.lm + self.cm) == list(range(10, 19)) and sorted(self.ko) == list(range(5))

    def kslot(self, t):
        return sum(((t >> k) & 1) << self.ko[k] for k in range(5))

    def coff(self, c):
        return sum(((c >> k) & 1) << self.cm[k] for k in range(5))

    def touch(self, name, waves):
        a = self.a
        self.sites[name] = len(waves)
        done = set()
        for k, w in enumerate(waves):
            a("s_cmp_eq_u32 s3, %d" % w)
            a("s_cbranch_scc1 .Lst_%s_%d" % (name, k))
            if w in waves[k + 1:]:
                a.label(".Lrt_%s_%d" % (name, k))
                done.add(k)
        for k in range(len(waves)):
            if k not in done:
                a.label(".Lrt_%s_%d" % (name, k))

    def cstamp(self, i):
        if self.o["stamps"] == 8:
            a = self.a
            a("s_sub_u32 s%d, 0x3ffff, s%d" % (S_STAMP + 2 * i, S_BUD))
            a("s_mul_i32 s%d, s%d, 100" % (S_STAMP + 2 * i, S_STAMP + 2 * i))
            a("s_add_u32 s%d, s%d, s%d" % (S_STAMP + 2 * i, S_STAMP + 2 * i, S_STAMP))
            a("s_addc_u32 s%d, s%d, 0" % (S_STAMP + 2 * i + 1, S_STAMP + 1))

    def stamp(self, i, mode=None):
        if self.o["stamps"] == 7 and mode is None and i in (6, 7, 8):
            return
        if self.o["stamps"] and (mode is None or mode == self.o["stamps"]):
            self.a("s_memrealtime s[%d:%d]" % (S_STAMP + 2 * i, S_STAMP + 2 * i + 1))

    def ld_ws(self, r, n, vo, so, imm):
        if n == 1:
            self.a("buffer_load_dword v%d, v%d, s[%d:%d], %s offen offset:%d sc1" % (r, vo, R_WS, R_WS + 3, so, imm))
            return
        self.a("buffer_load_dwordx%d %s, v%d, s[%d:%d], %s offen offset:%d sc1%s" % (n, vr(r, n), vo, R_WS, R_WS + 3, so, imm, " nt" if self.o["pnt"] & 2 else getattr(self, "nt", "")))

    def tagcheck(self, tags, vmin, vmax):
        a = self.a
        if len(tags) == 1:
            a("v_cmp_eq_u32 vcc, s%d, v%d" % (S_TAG, tags[0]))
            return
        if len(tags) == 2:
            a("v_cmp_eq_u32 vcc, s%d, v%d" % (S_TAG, tags[0]))
            a("v_cmp_eq_u32 s[%d:%d], s%d, v%d" % (T0, T0 + 1, S_TAG, tags[1]))
        else:
            t = list(tags)
            if len(t) % 2 == 0:
                a("v_min_u32 v%d, v%d, v%d" % (vmin, t[0], t[1]))
                a("v_max_u32 v%d, v%d, v%d" % (vmax, t[0], t[1]))
                t = t[2:]
            else:
                a("v_min3_u32 v%d, v%d, v%d, v%d" % (vmin, t[0], t[1], t[2]))
                a("v_max3_u32 v%d, v%d, v%d, v%d" % (vmax, t[0], t[1], t[2]))
                t = t[3:]
            for i in range(0, len(t), 2):
                a("v_min3_u32 v%d, v%d, v%d, v%d" % (vmin, vmin, t[i], t[i + 1]))
                a("v_max3_u32 v%d, v%d, v%d, v%d" % (vmax, vmax, t[i], t[i + 1]))
            a("v_cmp_eq_u32 vcc, s%d, v%d" % (S_TAG, vmin))
            a("v_cmp_eq_u32 s[%d:%d], s%d, v%d" % (T0, T0 + 1, S_TAG, vmax))
        a("s_and_b64 vcc, vcc, s[%d:%d]" % (T0, T0 + 1))

    def dry_skip(self, lab):
        self.a("s_cmp_lg_u32 s%d, 0" % S_DRY)
        self.a("s_cbranch_scc1 %s" % lab)

    def gpoll(self, loads, tags, vmin, vmax, sleep=0, first_issued=False, vm=None, vtag=None, dry=False, alt=None):
        a = self.a
        L = a.newlabel("gp"); C = a.newlabel("gpc"); D = a.newlabel("gpd")
        if dry:
            self.dry_skip(D)
        if first_issued:
            vm.wait(vtag)
            a("s_branch %s" % C)
        a.label(L)
        if alt is not None:
            a("s_xor_b32 s%d, s%d, 0x%x" % (alt, alt, FAST))
        for l in loads:
            self.ld_ws(*l)
        a("s_waitcnt vmcnt(0)")
        a.label(C)
        self.tagcheck(tags, vmin, vmax)
        a("s_cmp_eq_u64 vcc, -1")
        a("s_cbranch_scc1 %s" % D)
        a("s_sub_u32 s%d, s%d, 1" % (S_BUD, S_BUD))
        a("s_cbranch_scc1 .Lexit")
        if sleep:
            a("s_sleep %d" % sleep)
        a("s_branch %s" % L)
        a.label(D)
        if vm is not None and not first_issued:
            vm.q = []

    def gpoll2(self, loads, bases, tags, vmin, vmax, sleep=0, dry=False, issued=False):
        a = self.a
        L = a.newlabel("gp"); D = a.newlabel("gpd")
        if dry:
            self.dry_skip(D)
        if self.o["slow64"]:
            a("s_mov_b32 s%d, 0" % S_KV)
        if issued:
            C = a.newlabel("gpc")
            a("s_branch %s" % C)
        a.label(L)
        if self.o["fast"]:
            if self.o["slow64"]:
                a("s_add_u32 s%d, s%d, 1" % (S_KV, S_KV))
                a("s_and_b32 s%d, s%d, 0x41" % (T0, S_KV))
                a("s_cmp_lg_u32 s%d, 0x41" % T0)
            else:
                a("s_and_b32 s%d, s%d, 7" % (T0, S_BUD))
            if self.o["nosl"]:
                a("s_cselect_b32 s%d, 0, 0x%x" % (T0, FAST))
                a("s_xor_b32 s%d, s%d, s0" % (T0, T0))
            elif self.o["xt"]:
                a("s_cselect_b32 s%d, s0, 0" % T0)
            else:
                a("s_cselect_b32 s%d, 0x%x, 0" % (T0, FAST))
            for wk, bs in bases:
                a("s_add_u32 s%d, s%d, s%d" % (wk, bs, T0))
        else:
            for wk, bs in bases:
                a("s_mov_b32 s%d, s%d" % (wk, bs))
        self.nt = " nt" if self.o["pnt"] & 1 else ""
        for l in loads:
            self.ld_ws(*l)
        self.nt = ""
        if issued:
            a.label(C)
        a("s_waitcnt vmcnt(0)")
        self.tagcheck(tags, vmin, vmax)
        a("s_cmp_eq_u64 vcc, -1")
        a("s_cbranch_scc1 %s" % D)
        a("s_sub_u32 s%d, s%d, 1" % (S_BUD, S_BUD))
        a("s_cbranch_scc1 .Lexit")
        if sleep:
            a("s_sleep %d" % sleep)
        a("s_branch %s" % L)
        a.label(D)

    def mpoll(self, loads, tags, bases=None):
        a = self.a
        n = len(loads)
        PM = [4 + 2 * i for i in range(n)]
        assert PM[-1] + 1 < P_OUT
        L = a.newlabel("mp"); D = a.newlabel("mpd")
        for p in PM:
            a("s_mov_b64 s[%d:%d], -1" % (p, p + 1))
        if bases:
            assert self.o["xt"] and self.o["slow64"]
            a("s_mov_b32 s%d, 0" % S_KV)
        a.label(L)
        if bases:
            a("s_add_u32 s%d, s%d, 1" % (S_KV, S_KV))
            a("s_and_b32 s%d, s%d, 0x41" % (T0, S_KV))
            a("s_cmp_lg_u32 s%d, 0x41" % T0)
            a("s_cselect_b32 s%d, s0, 0" % T0)
            for wk, bs in bases:
                a("s_add_u32 s%d, s%d, s%d" % (wk, bs, T0))
        for i, l in enumerate(loads):
            a("s_mov_b64 exec, s[%d:%d]" % (PM[i], PM[i] + 1))
            self.ld_ws(*l)
        a("s_mov_b64 exec, -1")
        for i in range(n):
            a("s_waitcnt vmcnt(%d)" % (n - 1 - i))
            a("v_cmp_ne_u32_e64 s[%d:%d], s%d, v%d" % (PM[i], PM[i] + 1, S_TAG, tags[i][0]))
            for t in tags[i][1:]:
                a("v_cmp_ne_u32_e32 vcc, s%d, v%d" % (S_TAG, t))
                a("s_or_b64 s[%d:%d], s[%d:%d], vcc" % (PM[i], PM[i] + 1, PM[i], PM[i] + 1))
            if i == 1:
                a("s_or_b64 s[%d:%d], s[%d:%d], s[%d:%d]" % (T0, T0 + 1, PM[0], PM[0] + 1, PM[1], PM[1] + 1))
            elif i > 1:
                a("s_or_b64 s[%d:%d], s[%d:%d], s[%d:%d]" % (T0, T0 + 1, T0, T0 + 1, PM[i], PM[i] + 1))
        a("s_cbranch_scc0 %s" % D)
        a("s_sub_u32 s%d, s%d, 1" % (S_BUD, S_BUD))
        a("s_cbranch_scc0 %s" % L)
        a("s_branch .Lexit")
        a.label(D)

    def ipoll(self, loads, vmin, vmax, alt=None):
        a = self.a
        n = len(loads)
        L = a.newlabel("ip"); D = a.newlabel("ipd")
        r = [l[0] for l in loads]
        a.label(L)
        for l in loads:
            self.ld_ws(*l)
        for i in range(n):
            a("s_waitcnt vmcnt(%d)" % (n - 1 - i))
            if i == 1:
                pass
            elif i & 1 == 0 and i:
                pass
            if i == 0:
                a("v_mov_b32 v%d, v%d" % (vmin, r[0] + 3))
                a("v_mov_b32 v%d, v%d" % (vmax, r[0] + 3))
            else:
                a("v_min_u32 v%d, v%d, v%d" % (vmin, vmin, r[i] + 3))
                a("v_max_u32 v%d, v%d, v%d" % (vmax, vmax, r[i] + 3))
            if i == n - 1:
                a("v_cmp_eq_u32 vcc, s%d, v%d" % (S_TAG, vmin))
                a("v_cmp_eq_u32 s[%d:%d], s%d, v%d" % (T0, T0 + 1, S_TAG, vmax))
            self.unpack24(r[i])
            if i:
                t = r[0] if i & 1 == 0 or i == 1 else r[0]
                for h in range(2):
                    a("v_pk_add_f32 %s, %s, %s" % (vr(t + 2 * h, 2), vr(t + 2 * h, 2), vr(r[i] + 2 * h, 2)))
        a("s_and_b64 vcc, vcc, s[%d:%d]" % (T0, T0 + 1))
        a("s_cmp_eq_u64 vcc, -1")
        a("s_cbranch_scc1 %s" % D)
        if alt is not None:
            a("s_xor_b32 s%d, s%d, 0x%x" % (alt, alt, FAST))
        a("s_sub_u32 s%d, s%d, 1" % (S_BUD, S_BUD))
        a("s_cbranch_scc0 %s" % L)
        a("s_branch .Lexit")
        a.label(D)

    def ppoll(self, loads, tags, merge, k, stride, base0, gap, bases=None, copies=0):
        a = self.a
        n = len(loads)
        PM = [4 + 2 * i for i in range(n)]
        assert PM[-1] + 1 < P_OUT
        L = a.newlabel("pp"); D = a.newlabel("ppd")
        for p in PM:
            a("s_mov_b64 s[%d:%d], -1" % (p, p + 1))
        if bases:
            a("s_mov_b32 s%d, 0" % S_KV)
        alt = {}
        if copies:
            nxt = R_K
            for so in sorted(set(l[3] for l in loads)):
                for c in range(1, k):
                    a("s_add_u32 s%d, %s, 0x%x" % (nxt, so, FAST * c))
                    alt[(so, c)] = "s%d" % nxt
                    nxt += 1
            assert nxt <= R_A

        def issue(s, first):
            if bases:
                a("s_add_u32 s%d, s%d, 1" % (S_KV, S_KV))
                a("s_and_b32 s%d, s%d, 0x81" % (T0, S_KV))
                a("s_cmp_lg_u32 s%d, 0x81" % T0)
                a("s_cselect_b32 s%d, 0x%x, 0" % (T0, FAST))
                for wk, bs in bases:
                    a("s_add_u32 s%d, s%d, s%d" % (wk, bs, T0))
            for i, (r, nn, vo, so, imm) in enumerate(loads):
                if not first:
                    a("s_mov_b64 exec, s[%d:%d]" % (PM[i], PM[i] + 1))
                self.ld_ws(base0 + s * stride + r, nn, vo, alt.get((so, s), so), imm)
        a("s_waitcnt vmcnt(0)")
        for s in range(k):
            issue(s, True)
            if s < k - 1:
                a("s_sleep %d" % gap)
        a.label(L)
        for s in range(k):
            sb = base0 + s * stride
            a("s_waitcnt vmcnt(%d)" % (n * (k - 1)))
            for i in range(n):
                a("s_mov_b64 exec, s[%d:%d]" % (PM[i], PM[i] + 1))
                for t in tags[i]:
                    a("v_cmpx_eq_u32 vcc, s%d, v%d" % (S_TAG, sb + t))
                merge(i, sb)
                a("s_andn2_b64 s[%d:%d], s[%d:%d], vcc" % (PM[i], PM[i] + 1, PM[i], PM[i] + 1))
                if i == 1:
                    a("s_or_b64 s[%d:%d], s[%d:%d], s[%d:%d]" % (T0, T0 + 1, PM[0], PM[0] + 1, PM[1], PM[1] + 1))
                elif i > 1:
                    a("s_or_b64 s[%d:%d], s[%d:%d], s[%d:%d]" % (T0, T0 + 1, T0, T0 + 1, PM[i], PM[i] + 1))
            a("s_cbranch_scc0 %s" % D)
            a("s_sub_u32 s%d, s%d, 1" % (S_BUD, S_BUD))
            a("s_cbranch_scc1 .Lexit")
            issue(s, False)
        a("s_branch %s" % L)
        a.label(D)
        a("s_mov_b64 exec, -1")

    def merge24(self, dst, src):
        a = self.a
        a("v_perm_b32 v%d, v%d, v%d, s%d" % (dst + 3, src, src + 1, T0 + 4))
        a("v_mov_b64 %s, %s" % (vr(dst, 2), vr(src, 2)))
        a("v_mov_b32 v%d, v%d" % (dst + 2, src + 2))
        a("v_perm_b32 v%d, v%d, v%d, s%d" % (dst + 3, dst + 3, src + 2, T0 + 5))

    def store2(self, data, vaddr, so, bit=1, n=4):
        a = self.a
        if self.o["fast"]:
            a("s_add_u32 s%d, s%d, 0x%x" % (T0 + 1, so, FAST))
            a("buffer_store_dwordx%d %s, v%d, s[%d:%d], s%d offen" % (n, vr(data, n), vaddr, R_WS, R_WS + 3, T0 + 1))
        if self.o["nosl"] & bit:
            assert self.o["xt"] and self.o["slow64"]
            lab = a.newlabel("nosl")
            a("s_cmp_lg_u32 s0, 0")
            a("s_cbranch_scc1 %s" % lab)
        a("buffer_store_dwordx%d %s, v%d, s[%d:%d], s%d offen sc1" % (n, vr(data, n), vaddr, R_WS, R_WS + 3, so))
        if self.o["nosl"] & bit:
            a.label(lab)

    def rnd(self, d, s):
        self.a("v_cvt_pk_bf16_f32 v%d, v%d, v%d" % (d, s, s))
        self.a("v_lshlrev_b32 v%d, 16, v%d" % (d, d))

    def unpk(self, d0, d1, p):
        if d0 == p:
            self.a("v_and_b32 v%d, 0xffff0000, v%d" % (d1, p))
            self.a("v_lshlrev_b32 v%d, 16, v%d" % (d0, p))
        else:
            self.a("v_lshlrev_b32 v%d, 16, v%d" % (d0, p))
            self.a("v_and_b32 v%d, 0xffff0000, v%d" % (d1, p))

    def rnd2(self, d):
        self.a("v_cvt_pk_bf16_f32 v%d, v%d, v%d" % (d, d, d + 1))
        self.unpk(d, d + 1, d)

    def xred(self, op, v, t, which):
        a = self.a
        if which in (4, 8):
            a("%s_dpp v%d, v%d, v%d row_ror:%d %s" % (op, v, v, v, which, DM))
        elif which == 1:
            a("%s_dpp v%d, v%d, v%d %s" % (op, v, v, v, QP1032))
        elif which == 2:
            a("%s_dpp v%d, v%d, v%d quad_perm:[2,3,0,1] %s" % (op, v, v, v, DM))
        else:
            a("v_mov_b32 v%d, v%d" % (t, v))
            a("v_permlane%d_swap_b32 v%d, v%d" % (which, t, v))
            a("%s v%d, v%d, v%d" % (op, v, t, v))

    def expneg(self, t, x, t2):
        a = self.a
        a("v_mul_f32 v%d, 0xbfb8aa3b, v%d" % (t, x))
        a("v_fma_f32 v%d, v%d, s%d, -v%d" % (t2, x, S_NL, t))
        a("v_fmac_f32 v%d, 0xb2a57060, v%d" % (t2, x))
        a("v_exp_f32 v%d, v%d" % (t, t))
        a("v_mul_f32 v%d, 0x3f317218, v%d" % (t2, t2))
        a("v_fmac_f32 v%d, v%d, v%d" % (t, t, t2))

    def silu(self, x, t, t2, t3=None, sig=False):
        a = self.a
        a("v_max_f32 v%d, 0xc2ae0000, v%d" % (x, x))
        if sig:
            t3 = x
        a("v_min_f32 v%d, 0x43000000, v%d" % (t3, x))
        self.expneg(t, t3, t2)
        a("v_add_f32 v%d, 1.0, v%d" % (t, t))
        a("v_rcp_f32 v%d, v%d" % (t2, t))
        if sig:
            a("v_fma_f32 v%d, -v%d, v%d, 1.0" % (t, t, t2))
            a("v_fma_f32 v%d, v%d, v%d, v%d" % (x, t, t2, t2))
        else:
            a("v_mul_f32 v%d, v%d, v%d" % (t3, x, t2))
            a("v_fma_f32 v%d, -v%d, v%d, v%d" % (t, t3, t, x))
            a("v_fma_f32 v%d, v%d, v%d, v%d" % (x, t, t2, t3))

    def mfma(self, d, A, B, c):
        self.a("v_mfma_f32_16x16x32_bf16 %s, %s, %s, %s" % (vr(d, 4), vr(A, 4), vr(B, 4), "0" if c is None else vr(c, 4)))

    def dma(self, srd, vo, soff, m0):
        a = self.a
        a("buffer_load_dwordx4 v%d, s[%d:%d], s%d offen nt lds" % (vo, srd, srd + 3, soff))

    def pack24(self, d, s):
        for i in range(3):
            self.a("v_perm_b32 v%d, v%d, v%d, s%d" % (d + i, s + i, s + 3, T0 + 4 + i))

    def pack_consts(self):
        a = self.a
        a("s_mov_b32 s%d, 0x07060503" % (T0 + 4))
        a("s_mov_b32 s%d, 0x07060502" % (T0 + 5))
        a("s_mov_b32 s%d, 0x07060501" % (T0 + 6))

    def unpack_consts(self):
        a = self.a
        a("s_mov_b32 s%d, 0x04000c0c" % (T0 + 4))
        a("s_mov_b32 s%d, 0x0706000c" % (T0 + 5))

    def unpack24(self, r):
        self.a("v_perm_b32 v%d, v%d, v%d, s%d" % (r + 3, r, r + 1, T0 + 4))
        self.a("v_perm_b32 v%d, v%d, v%d, s%d" % (r + 3, r + 3, r + 2, T0 + 5))

    def row_stats(self, P, st, after=None):
        a = self.a
        s, ss, t = st, st + 1, st + 2
        a("s_mov_b32 s%d, 0x3f803f80" % T0)
        a("v_dot2_f32_bf16 v%d, v%d, s%d, 0" % (s, P[0], T0))
        a("v_dot2_f32_bf16 v%d, v%d, v%d, 0" % (ss, P[0], P[0]))
        for i in range(1, 5):
            if i == 4:
                a("s_mov_b64 exec, 0xffffffff")
            a("v_dot2_f32_bf16 v%d, v%d, s%d, v%d" % (s, P[i], T0, s))
            a("v_dot2_f32_bf16 v%d, v%d, v%d, v%d" % (ss, P[i], P[i], ss))
        a("s_mov_b64 exec, -1")
        a("v_permlane32_swap_b32 v%d, v%d" % (s, ss))
        a("v_add_f32 v%d, v%d, v%d" % (s, s, ss))
        self.xred("v_add_f32", s, t, 16)
        fill = list(after or [])
        for w in (8, 4, 2, 1):
            for _ in range(2):
                if fill:
                    fill.pop(0)()
            self.xred("v_add_f32", s, t, w)
        a("v_mul_f32 v%d, 0x3ae38e39, v%d" % (s, s))
        for f in fill:
            f()
        a("v_readlane_b32 s%d, v%d, 0" % (T0, s))
        a("v_readlane_b32 s%d, v%d, 32" % (T0 + 1, s))
        a("v_mov_b32 v%d, s%d" % (s, T0))
        a("v_fma_f32 v%d, -v%d, v%d, s%d" % (ss, s, s, T0 + 1))
        a("v_max_f32 v%d, 0, v%d" % (ss, ss))
        a("v_cvt_pk_bf16_f32 v%d, -v%d, v%d" % (t, s, ss))
        a("v_and_b32 v%d, 0xffff0000, v%d" % (t + 1, t))
        a("v_add_f32 v%d, 0x3727c5ac, v%d" % (t + 1, t + 1))
        a("v_lshlrev_b32 v%d, 16, v%d" % (s, t))
        a("v_cvt_pk_bf16_f32 v%d, v%d, v%d" % (t + 1, t + 1, t + 1))
        a("v_lshlrev_b32 v%d, 16, v%d" % (t + 1, t + 1))
        a("v_sqrt_f32 v%d, v%d" % (t + 1, t + 1))
        a("v_mov_b32 v%d, v%d" % (ss, s))
        self.rnd(t + 1, t + 1)
        a("v_rcp_f32 v%d, v%d" % (t, t + 1))
        a("v_rcp_f32 v%d, v%d" % (t + 1, t + 1))

    def ln_apply(self, X, st):
        a = self.a
        for x in X:
            a("v_pk_add_f32 %s, %s, %s" % (vr(x, 2), vr(x, 2), vr(st, 2)))
        for x in X:
            self.rnd2(x)
        for x in X:
            a("v_pk_mul_f32 %s, %s, %s" % (vr(x, 2), vr(x, 2), vr(st + 2, 2)))
        for x in X:
            self.rnd2(x)

    def modulate(self, X, C1, S, out):
        a = self.a
        for x, c in zip(X, C1):
            a("v_pk_mul_f32 %s, %s, %s" % (vr(x, 2), vr(x, 2), vr(c, 2)))
        for x in X:
            self.rnd2(x)
        for x, s in zip(X, S):
            a("v_pk_add_f32 %s, %s, %s" % (vr(x, 2), vr(x, 2), vr(s, 2)))
        for x, o in zip(X, out):
            a("v_cvt_pk_bf16_f32 v%d, v%d, v%d" % (o, x, x + 1))

    def row_write(self, va8, va4, H, off=0):
        a = self.a
        a("ds_write_b64 v%d, %s offset:%d" % (va8, vr(H, 2), off))
        a("ds_write_b64 v%d, %s offset:%d" % (va8, vr(H + 2, 2), off + 512))
        a("ds_write_b32 v%d, v%d offset:%d" % (va4, H + 4, off))

    def row_loads(self, r, so):
        return [(r, 4, VV, so, 0), (r + 4, 4, VV, so, 1024), (r + 8, 2, VG8, so, 0)]

    def row_in(self, r, srd, so):
        a = self.a
        f = " " + self.o["inl"] if self.o["inl"] else ""
        a("buffer_load_dwordx2 %s, v%d, s[%d:%d], %s offen%s" % (vr(r, 2), VR8, srd, srd + 3, so, f))
        a("buffer_load_dwordx2 %s, v%d, s[%d:%d], %s offen offset:512%s" % (vr(r + 2, 2), VR8, srd, srd + 3, so, f))
        a("buffer_load_dword v%d, v%d, s[%d:%d], %s offen%s" % (r + 4, VR4, srd, srd + 3, so, f))

    def fixup(self, D, t):
        a = self.a
        a("v_permlane32_swap_b32 v%d, v%d" % (D, D + 2))
        a("v_permlane32_swap_b32 v%d, v%d" % (D + 1, D + 3))
        a("v_cndmask_b32 v%d, v%d, v%d, s[%d:%d]" % (D + 1, D + 1, D + 2, S_ODD, S_ODD + 1))
        a("v_cndmask_b32 v%d, v%d, v%d, s[%d:%d]" % (D, D, D + 3, S_ODD, S_ODD + 1))
        a("v_add_f32_dpp v%d, v%d, v%d %s" % (t, D + 1, D, QP1032))

    def act_addr(self, vb, v8, v4, t):
        a = self.a
        a("v_bfe_u32 v%d, v0, 1, 3" % vb)
        a("v_mul_u32_u24 v%d, %d, v%d" % (vb, APITCH, vb))
        a("v_lshrrev_b32 v%d, 4, v0" % t)
        a("v_lshl_add_u32 v%d, v%d, 5, v%d" % (vb, t, vb))
        a("v_and_b32 v%d, 1, v0" % t)
        a("v_lshl_add_u32 v%d, v%d, 4, v%d" % (vb, t, vb))
        a("v_add_u32 v%d, %d, v%d" % (vb, L_ACT, vb))
        a("s_mul_i32 s%d, s3, %d" % (T0, APITCH))
        a("s_add_u32 s%d, s%d, %d" % (T0, T0, L_ACT))
        a("v_add_u32 v%d, s%d, v%d" % (v8, T0, VR8))
        a("v_add_u32 v%d, s%d, v%d" % (v4, T0, VR4))

    def gemv9(self, W, B, D, vb):
        a = self.a
        for s in range(9):
            a("ds_read_b128 %s, v%d offset:%d" % (vr(B + 4 * s, 4), vb, 128 * s))
        for s in range(9):
            a("s_waitcnt lgkmcnt(%d)" % (8 - s))
            self.mfma(D, W + 4 * s, B + 4 * s, None if s == 0 else D)

    def prologue(self):
        a = self.a
        a("s_cmp_ge_u32 s2, 256")
        a("s_cbranch_scc1 .Lend")
        if self.o["jx"]:
            a("s_xor_b32 s2, s2, %d" % self.o["jx"])
        a("s_load_dwordx16 s[4:19], s[0:1], 0")
        a("s_load_dwordx8 s[20:27], s[0:1], 64")
        a("s_load_dwordx4 s[28:31], s[0:1], 96")
        a("s_load_dwordx2 s[32:33], s[0:1], 112")
        if self.o["stamps"]:
            for i in range(1, NS):
                a("s_mov_b64 s[%d:%d], 0" % (S_STAMP + 2 * i, S_STAMP + 2 * i + 1))
        self.stamp(0)
        if self.o["ap"] and self.o["apo"] >= 0 and not self.o["stamps"]:
            a("s_memrealtime s[%d:%d]" % (S_STAMP, S_STAMP + 1))
        a("v_lshrrev_b32 v1, 6, v0")
        a("v_and_b32 v0, 63, v0")
        a("v_readfirstlane_b32 s3, v1")
        if self.o["tw"] & 1:
            a("s_cmp_lt_u32 s3, 4")
            a("s_cbranch_scc1 .Ltw_done")
            a("s_cmp_lt_u32 s2, 72")
            a("s_cbranch_scc1 .Ltw_m")
            a("s_cmp_lt_u32 s2, 144")
            a("s_cbranch_scc1 .Ltw_b")
            a("s_cmp_lt_u32 s2, 208")
            a("s_cbranch_scc1 .Ltw_q")
            self.touch("a0", [4, 5])
            a("s_branch .Ltw_done")
            a.label(".Ltw_m")
            self.touch("m0", [4, 5, 6, 7, 5, 6])
            a("s_branch .Ltw_done")
            a.label(".Ltw_b")
            self.touch("b0", [4, 5, 6, 7])
            a("s_branch .Ltw_done")
            a.label(".Ltw_q")
            self.touch("q0", [4, 5, 6, 7])
            a.label(".Ltw_done")
        a("s_mov_b32 s%d, 0x3ffff" % S_BUD)
        a("s_mov_b32 s%d, 0xbfb8aa3b" % S_NL)
        a("s_mov_b32 s%d, 0x05040100" % S_LO)
        a("s_mov_b32 s%d, 0x07060302" % S_HI)
        a("s_mov_b32 s%d, 0xaaaaaaaa" % S_ODD)
        a("s_mov_b32 s%d, 0xaaaaaaaa" % (S_ODD + 1))
        a("s_and_b32 s%d, s2, 7" % S_X)
        a("s_lshr_b32 s%d, s2, 3" % S_R)
        bal = self.o["bal"]
        if bal:
            assert self.lm[:3] == [10, 11, 12]
            sp = ([(15, 7)] if bal & 1 else []) + ([(21, 8)] if bal & 2 else [])
            if bal & 4:
                sp += [(26, 9), (27, 10), (28, 11), (29, 12), (30, 13), (31, 16)]
            pairs = sp + [(14, 6)]
            rest = [r for r in range(32) if not any(r in q for q in pairs)]
            pairs += list(zip(rest[1::2], rest[0::2]))
            pn = {r: k for k, q in enumerate(pairs) for r in q}
            tb = sum(pn[r] << (4 * r) for r in range(32))
            hm = sum(1 << q[0] for q in pairs)
            spm = sum(1 << r for q in sp for r in q)
            a("s_mov_b32 s%d, 0x%x" % (T0 + 2, tb & 0xffffffff))
            a("s_mov_b32 s%d, 0x%x" % (T0 + 3, (tb >> 32) & 0xffffffff))
            a("s_cmp_ge_u32 s%d, 16" % S_R)
            a("s_cselect_b32 s%d, 0x%x, s%d" % (T0 + 2, (tb >> 64) & 0xffffffff, T0 + 2))
            a("s_cselect_b32 s%d, 0x%x, s%d" % (T0 + 3, (tb >> 96) & 0xffffffff, T0 + 3))
            a("s_lshl_b32 s%d, s%d, 2" % (T0 + 1, S_R))
            a("s_lshr_b64 s[%d:%d], s[%d:%d], s%d" % (T0 + 2, T0 + 3, T0 + 2, T0 + 3, T0 + 1))
            if self.o["mix"] == 1:
                a("s_lshl1_add_u32 s%d, s%d, 1" % (T0 + 3, S_X))
                a("s_mul_i32 s%d, s%d, s%d" % (T0 + 2, T0 + 2, T0 + 3))
                a("s_add_u32 s%d, s%d, s%d" % (T0 + 2, T0 + 2, S_X))
                a("s_add_u32 s%d, s%d, s%d" % (T0 + 2, T0 + 2, T0 + 3))
            elif self.o["mix"] == 2:
                a("s_lshl1_add_u32 s%d, s%d, s%d" % (T0 + 2, S_X, T0 + 2))
            elif self.o["mix"] == 3:
                a("s_mul_i32 s%d, s%d, 9" % (T0 + 3, S_X))
                a("s_xor_b32 s%d, s%d, s%d" % (T0 + 2, T0 + 2, T0 + 3))
            a("s_and_b32 s%d, s%d, 7" % (S_B, T0 + 2))
            a("s_bfe_u32 s%d, s%d, 0x10003" % (S_HKV, T0 + 2))
            a("s_lshl1_add_u32 s%d, s%d, s%d" % (S_HKV, S_X, S_HKV))
            a("s_lshr_b32 s%d, 0x%x, s%d" % (S_HALF, hm, S_R))
            a("s_and_b32 s%d, s%d, 1" % (S_HALF, S_HALF))
            a("s_movk_i32 s%d, 0x7651" % (T0 + 4))
            a("s_cselect_b32 s%d, 0x4320, s%d" % (T0 + 4, T0 + 4))
            a("s_lshl4_add_u32 s%d, s%d, s%d" % (S_KV, S_B, S_HKV))
            a("s_lshl_b32 s%d, s%d, 21" % (S_KV, S_KV))
            a("s_cmp_eq_u32 s%d, 7" % S_X)
            a("s_cselect_b32 s%d, 0x%x, 0" % (T0 + 2, (1 << 14 | 1 << 6) if bal & 1 else 0))
            a("s_or_b32 s%d, s%d, 0x%x" % (T0 + 2, T0 + 2, spm))
            a("s_bitcmp1_b32 s%d, s%d" % (T0 + 2, S_R))
            a("s_cselect_b32 s%d, s%d, 0x3210" % (T0 + 4, T0 + 4))
            a("s_and_b32 s%d, s3, 1" % (T0 + 1))
            a("s_and_b32 s%d, s3, 6" % (T0 + 3))
            a("s_cmpk_eq_u32 s%d, 0x3210" % (T0 + 4))
            a("s_cselect_b32 s%d, s%d, s%d" % (T0 + 1, S_HALF, T0 + 1))
            a("s_cselect_b32 s%d, s3, s%d" % (T0 + 3, T0 + 3))
            a("s_lshl_b32 s%d, s%d, %d" % (T0 + 1, T0 + 1, self.lm[3]))
            a("s_lshl_b32 s%d, s%d, 10" % (T0 + 3, T0 + 3))
            a("s_add_u32 s%d, s%d, s%d" % (S_KV, S_KV, T0 + 1))
            a("s_add_u32 s%d, s%d, s%d" % (S_KV, S_KV, T0 + 3))
        else:
            a("s_and_b32 s%d, s%d, 7" % (S_B, S_R))
            a("s_lshr_b32 s%d, s2, 7" % S_HKV)
            a("s_lshl1_add_u32 s%d, s%d, s%d" % (S_HKV, S_X, S_HKV))
            a("s_bfe_u32 s%d, s2, 0x10006" % S_HALF)
            a("s_lshl4_add_u32 s%d, s%d, s%d" % (S_KV, S_B, S_HKV))
            a("s_lshl_b32 s%d, s%d, 21" % (S_KV, S_KV))
            a("s_lshl_b32 s%d, s%d, %d" % (T0, S_HALF, self.lm[3]))
            a("s_add_u32 s%d, s%d, s%d" % (S_KV, S_KV, T0))
        if bal:
            pass
        elif self.lm[1] == self.lm[0] + 1 and self.lm[2] == self.lm[0] + 2:
            a("s_lshl_b32 s%d, s3, %d" % (T0, self.lm[0]))
            a("s_add_u32 s%d, s%d, s%d" % (S_KV, S_KV, T0))
        else:
            for k in range(3):
                a("s_bfe_u32 s%d, s3, 0x%x" % (T0, 0x10000 | k))
                a("s_lshl_b32 s%d, s%d, %d" % (T0, T0, self.lm[k]))
                a("s_add_u32 s%d, s%d, s%d" % (S_KV, S_KV, T0))
        a("s_add_u32 s%d, s%d, 0x%x" % (S_KV, S_KV, 6144 * 256))
        if self.o["rot"]:
            a("s_mul_i32 s%d, s%d, %d" % (T0, S_R, self.o["rota"]))
            a("s_mul_i32 s%d, s%d, %d" % (T0 + 1, S_X, self.o["rotb"]))
            a("s_add_u32 s%d, s%d, s%d" % (T0, T0, T0 + 1))
            if self.o["rsh"]:
                a("s_lshr_b32 s%d, s%d, %d" % (T0, T0, self.o["rsh"]))
            for k in range(5):
                if self.o["rot"] >> k & 1:
                    a("s_bfe_u32 s%d, s%d, 0x%x" % (T0 + 1, T0, 0x10000 | k))
                    a("s_lshl_b32 s%d, s%d, %d" % (T0 + 1, T0 + 1, self.cm[k]))
                    a("s_add_u32 s%d, s%d, s%d" % (S_KV, S_KV, T0 + 1))
        a("v_bfe_u32 v%d, v0, 2, 2" % VK)
        if bal:
            a("v_lshlrev_b32 v%d, 2, v%d" % (VK, VK))
            a("v_bfe_u32 v%d, s%d, v%d, 4" % (VK, T0 + 4, VK))
        a("v_lshrrev_b32 v2, 4, v0")
        a("v_lshl_add_u32 v%d, v%d, 2, v2" % (VK, VK))
        a("v_and_b32 v2, 3, v0")
        a("v_lshl_add_u32 v%d, v%d, 2, v2" % (VK, VK))
        a("v_lshlrev_b32 v%d, 4, v%d" % (VK, VK))
        a("v_lshlrev_b32 v%d, 4, v0" % VV)
        a("v_lshlrev_b32 v%d, 3, v0" % VR8)
        a("v_and_b32 v%d, 31, v0" % VR4)
        a("v_lshlrev_b32 v%d, 2, v%d" % (VR4, VR4))
        a("v_add_u32 v%d, 1024, v%d" % (VR4, VR4))
        a("v_lshlrev_b32 v%d, 1, v%d" % (VG8, VR4))
        a("s_waitcnt lgkmcnt(0)")
        self.stamp(1, 5)
        a("s_load_dword s%d, s[%d:%d], 0" % (S_TAG, P_WS, P_WS + 1))
        if self.o["tpace"] or (self.o["ap"] and self.o["apo"] < 0):
            a("s_memrealtime s[%d:%d]" % (S_T0, S_T0 + 1))
        if self.o["pace"]:
            a("s_lshl_b32 s%d, s%d, 8" % (S_T0 + 1, S_X))
            a("s_add_u32 s%d, s%d, 0x%x" % (S_T0 + 1, S_T0 + 1, PCG - 1024))
            a("s_lshl2_add_u32 s%d, s%d, s%d" % (S_NOW + 1, S_R, S_T0 + 1))
            a("s_add_u32 s%d, s%d, 1024" % (S_NOW + 1, S_NOW + 1))
        a.srd(R_K, P_K, 1 << 28)
        if bal:
            assert not self.o["gs"]
            a("s_mov_b32 s%d, s%d" % (P_K, T0 + 4))
        if self.o["kpre"]:
            kp, self.o["kpre"] = self.o["kpre"], 0
            if self.o["wf"] & 1:
                a("s_cmp_lt_u32 s2, 18")
                a("s_cbranch_scc1 .Lnokpre")
            if self.o["wf"] & 2:
                a("s_sub_u32 s%d, s2, 144" % T0)
                a("s_cmp_lt_u32 s%d, 64" % T0)
                a("s_cbranch_scc1 .Lnokpre")
            for n in range(kp):
                self.kload(VM(a), n)
            if self.o["kp2"]:
                k2, self.o["kp2"] = self.o["kp2"], 0
                st_, self.o["stamps"] = self.o["stamps"], 0
                a("s_cmp_lt_u32 s3, 4")
                a("s_cselect_b64 exec, -1, 0")
                for n in range(kp, kp + k2):
                    self.kload(VM(a), n)
                a("s_mov_b64 exec, -1")
                self.o["kp2"], self.o["stamps"] = k2, st_
            a.label(".Lnokpre")
            self.o["kpre"] = kp
        a.srd(R_V, P_V, 1 << 28)
        if self.o["vt"]:
            a("s_cmp_eq_u32 s3, %d" % (self.o["vt"] - 1))
            a("s_cselect_b64 exec, 1, 0")
            a("buffer_load_dword v255, v%d, s[%d:%d], s%d offen nt" % (VV, R_V, R_V + 3, S_KV))
            a("s_mov_b64 exec, -1")
        a.srd(R_WS, P_WS, 1 << 30)
        if self.o["dt"] & 2:
            a("v_lshlrev_b32 v254, 21, v0")
            a("s_cmp_eq_u32 s3, 2")
            a("s_cselect_b64 exec, 0x17, 0")
            a("buffer_load_dword v254, v254, s[%d:%d], 0 offen offset:1024 nt" % (R_WS, R_WS + 3))
            a("s_mov_b64 exec, -1")
        if self.o["et"]:
            a("s_lshl3_add_u32 s%d, s3, s2" % T0)
            a("s_cmp_lt_u32 s%d, 8" % T0)
            a("s_cbranch_scc0 .Let_no")
            a("s_lshl2_add_u32 s%d, s2, 0x%x" % (T0, ETG))
            a("v_lshlrev_b32 v6, 8, v0")
            a("v_mov_b32 v7, s%d" % S_STAMP)
            a("s_mov_b64 exec, 3")
            a("buffer_store_dword v7, v6, s[%d:%d], s%d offen sc1" % (R_WS, R_WS + 3, T0))
            a("s_mov_b64 exec, -1")
            a.label(".Let_no")
        if self.o["mlc"]:
            a("v_mov_b32 v6, %d" % (L_ML + 128))
            a("v_mov_b32 v7, 0")
            if self.o["qsh"]:
                a("v_mov_b32 v8, 0")
                a("v_mov_b32 v9, 0")
                a("ds_write_b32 v6, v7")
                a("ds_write2_b32 v6, v8, v9 offset0:1 offset1:2")
            else:
                a("ds_write_b32 v6, v7")
            if self.o["oa"]:
                assert not self.o["qsh"]
                a("v_add_u32 v6, %d, v%d" % (L_Q, VV))
                for i in range(8, 12):
                    a("v_mov_b32 v%d, 0" % i)
                a("ds_write_b128 v6, v[8:11]")
            if not self.o["exp"] & 128:
                a("s_waitcnt lgkmcnt(0)")
                a("s_barrier")
        if self.o["prio"]:
            a("s_cmp_lt_u32 s3, 4")
            a.lines.append("    s_cbranch_scc1 1")
            a.lines.append("    s_setprio 1")
        a("s_cmp_lt_u32 s%d, 9" % S_R)
        a("s_cbranch_scc1 .Lm")
        a("s_cmp_lt_u32 s%d, 18" % S_R)
        a("s_cbranch_scc1 .Lbc")

    def tagwait(self, vm=None):
        self.a("s_waitcnt lgkmcnt(0)")
        self.a("s_add_u32 s%d, s%d, 1" % (S_TAG, S_TAG))
        if self.o["xt"]:
            a = self.a
            a("s_getreg_b32 s1, hwreg(HW_REG_XCC_ID)")
            a("s_lshl_b32 s1, s1, 24")
            a("s_add_u32 s1, s1, s%d" % S_TAG)
            a("s_lshr_b32 s0, s2, 3")
            if self.o["xt"] == 2:
                a("s_lshl_b32 s%d, s%d, 8" % (T0 + 7, S_X))
            else:
                a("s_lshl3_add_u32 s%d, s%d, s3" % (T0 + 7, S_X))
                a("s_lshl_b32 s%d, s%d, 5" % (T0 + 7, T0 + 7))
            a("s_add_u32 s0, s0, s%d" % (T0 + 7))
            a("s_lshl2_add_u32 s0, s0, 0x%x" % XT)
            a("v_mov_b32 v30, s1")
            if self.o["xt"] == 2:
                a("s_cmp_eq_u32 s3, 0")
                a("s_cselect_b64 exec, 1, 0")
            else:
                a("s_mov_b64 exec, 1")
            a("buffer_store_dword v30, v%d, s[%d:%d], s0 offen sc1" % (VV, R_WS, R_WS + 3))
            a("s_mov_b64 exec, -1")
            if vm is not None:
                vm.issue("ps")
        if self.o["pace"]:
            self.a("s_lshl_b32 s%d, s%d, 8" % (S_T0, S_TAG))

    def dma64_addr(self, vd, pitch, t):
        a = self.a
        a("v_bfe_u32 v%d, v0, 4, 1" % t)
        a("s_and_b32 s%d, s3, 3" % T0)
        a("s_lshl_b32 s%d, s%d, 1" % (T0, T0))
        a("v_or_b32 v%d, s%d, v%d" % (t, T0, t))
        a("v_and_b32 v%d, 7, v0" % vd)
        a("v_xor_b32 v%d, v%d, v%d" % (t, t, vd))
        a("v_lshrrev_b32 v%d, 3, v0" % vd)
        a("v_mul_u32_u24 v%d, %d, v%d" % (vd, pitch, vd))
        a("v_lshl_add_u32 v%d, v%d, 4, v%d" % (vd, t, vd))

    def dma64(self, vd, srd, pitch, sbase, simg):
        a = self.a
        for i in range(9):
            a("s_add_u32 m0, s%d, %d" % (simg, 8192 * i))
            a("s_add_u32 s%d, s%d, %d" % (T0, sbase, 64 * pitch * i))
            a("buffer_load_dwordx4 v%d, s[%d:%d], s%d offen nt lds" % (vd, srd, srd + 3, T0))

    def tr64_addr(self, vd, t, t2):
        a = self.a
        a("v_lshrrev_b32 v%d, 4, v0" % t)
        a("v_bfe_u32 v%d, v0, 1, 1" % t2)
        a("v_lshl_add_u32 v%d, v%d, 1, v%d" % (t, t, t2))
        a("v_bfe_u32 v%d, v0, 2, 2" % t2)
        a("v_lshl_add_u32 v%d, v%d, 3, v%d" % (vd, t, t2))
        a("v_lshlrev_b32 v%d, 7, v%d" % (vd, vd))
        a("v_and_b32 v%d, 3, v%d" % (t, t))
        a("v_lshrrev_b32 v%d, 1, v%d" % (t2, t2))
        a("v_lshl_add_u32 v%d, v%d, 1, v%d" % (t, t, t2))
        a("v_xor_b32 v%d, s3, v%d" % (t, t))
        a("v_lshl_add_u32 v%d, v%d, 4, v%d" % (vd, t, vd))
        a("v_and_b32 v%d, 1, v0" % t)
        a("v_lshl_add_u32 v%d, v%d, 3, v%d" % (vd, t, vd))

    def tr64(self, W, va, vb, st=4):
        a = self.a
        for s in range(9):
            for u in range(2):
                off = 8192 * s + 512 * u
                v = va
                if s >= 4:
                    v = vb; off -= 32768
                a("ds_read_b64_tr_b16 %s, v%d offset:%d" % (vr(W + st * s + 2 * u, 2), v, off))

    def quad_gran(self, t, g):
        a = self.a
        a("v_mov_b32_dpp v%d, v%d quad_perm:[0,0,2,2] %s" % (g + 1, t, DM))
        a("v_mov_b32_dpp v%d, v%d quad_perm:[1,1,3,3] %s" % (g + 3, t, DM))
        a("v_cvt_pk_bf16_f32 v%d, v%d, v%d" % (g, g + 1, g + 3))
        a("v_cvt_pk_bf16_f32 v%d, v%d, v%d" % (g + 2, g + 1, g + 3))
        a("v_mov_b32 v%d, s%d" % (g + 1, S_TAG))
        a("v_mov_b32 v%d, s%d" % (g + 3, S_TAG))
        a("v_permlane32_swap_b32 v%d, v%d" % (g, g + 2))

    def pub_addr(self, vw, vrd, t):
        a = self.a
        a("v_bfe_u32 v%d, v0, 1, 3" % vw)
        a("v_mul_u32_u24 v%d, 144, v%d" % (vw, vw))
        a("v_bfe_u32 v%d, v0, 4, 1" % t)
        a("v_lshl_add_u32 v%d, v%d, 3, v%d" % (vw, t, vw))
        a("v_lshrrev_b32 v%d, 5, v0" % t)
        a("v_lshl_add_u32 v%d, v%d, 2, v%d" % (vw, t, vw))
        a("v_and_b32 v%d, 1, v0" % t)
        a("v_lshl_add_u32 v%d, v%d, 1, v%d" % (vw, t, vw))
        a("s_lshl_b32 s%d, s3, 4" % T0)
        a("s_add_u32 s%d, s%d, %d" % (T0, T0, L_PUB))
        a("v_add_u32 v%d, s%d, v%d" % (vw, T0, vw))
        a("v_and_b32 v%d, 15, v0" % vrd)
        a("v_lshlrev_b32 v%d, 3, v%d" % (vrd, vrd))
        a("s_mul_i32 s%d, s3, 144" % T0)
        a("s_add_u32 s%d, s%d, %d" % (T0, T0, L_PUB))
        a("v_add_u32 v%d, s%d, v%d" % (vrd, T0, vrd))

    def pub_stage(self, t, g):
        a = self.a
        a("v_cvt_pk_bf16_f32 v%d, v%d, v%d" % (t, t, t))
        a("ds_write_b16 v%d, v%d" % (self.EPW, t))
        a("v_mov_b32 v%d, s%d" % (g + 3, S_TAG))
        a("s_waitcnt lgkmcnt(0)")
        a("s_barrier")
        a("ds_read2_b32 v[%d:%d], v%d offset1:1" % (g + 4, g + 5, self.EPR))
        a("v_mov_b32 v%d, s%d" % (g + 1, S_TAG))
        a("s_waitcnt lgkmcnt(0)")
        a("v_mov_b32 v%d, v%d" % (g, g + 4))
        a("v_mov_b32 v%d, v%d" % (g + 2, g + 5))

    def sched(self, n, cls):
        o = self.o
        return int(o["pa"] + (o["pb"] - o["pd_" + cls] - o["pa"]) * (n - 8) / 55.0)

    def opn(self, cls):
        return min(self.o["opn_p"], self.o["opn_bc"]) if cls == "bc" else self.o["opn_p"]

    def apsched(self, n, cls, pre=None):
        o = self.o
        if not o["ap"] or cls is None:
            return None
        off = o["ap_bc"] if cls == "bc" else 0
        kn = [[int(y) for y in x.split(":")] for x in ((pre + "," if pre else "") + str(o["aps_" + cls])).split(",") if x]
        if not kn:
            if n <= max(o["ap"], o["qc_" + cls] + 6):
                return None
        elif n <= kn[0][0]:
            return None
        mid = [[int(y) for y in x.split(":")] for x in str(o["apx"]).split(",") if x]
        kn += [[44, o["apt"] + off]] + [[p, t + off] for p, t in mid] + [[64, o["apt"] + off + 2 * o["apr"]]]
        if len(kn) == 2:
            kn = [[24, o["apt"] + off - 2 * o["apr"]]] + kn
        for (p0, t0), (p1, t1) in zip(kn, kn[1:]):
            if n - 1 <= p1:
                return t0 + ((t1 - t0) * (n - 1 - p0)) // (p1 - p0)

    def flow(self, n, cls, vm, w, pace=True, kn=None):
        o, a = self.o, self.a
        th = self.apsched(n, cls, kn)
        if th is None:
            if w:
                vm.window(w)
            if pace:
                self.pace(n, cls, vm)
            return
        a("s_memrealtime s[%d:%d]" % (P_V, P_V + 1))
        vm.window(o["apw2"] or o["apw"])
        lab = a.newlabel("ap")
        a("s_waitcnt lgkmcnt(0)")
        a("s_sub_u32 s%d, s%d, s%d" % (P_V, P_V, S_T0))
        th += max(0, o["apo"])
        if o["apl"] and n >= o["apl0"]:
            last = len(vm.q)
            for off, wn in [[int(y) for y in x.split(":")] for x in str(o["apl"]).replace("m", "-").split(",")]:
                c = vm.cnt_for(wn - 1)
                if c >= last:
                    continue
                last = c
                a("s_cmpk_ge_u32 s%d, %d" % (P_V, max(0, th + off)))
                a("s_cbranch_scc1 %s" % lab)
                a("s_waitcnt vmcnt(%d)" % c)
            a.label(lab)
            return
        if o["apw2"]:
            a("s_cmpk_ge_u32 s%d, %d" % (P_V, th + o["ap4"]))
            a("s_cbranch_scc1 %s" % lab)
            a("s_waitcnt vmcnt(%d)" % vm.cnt_for(o["apw"] - 1))
        a("s_cmpk_ge_u32 s%d, %d" % (P_V, th + o["ap1"]))
        a("s_cbranch_scc1 %s" % lab)
        a("s_waitcnt vmcnt(%d)" % vm.cnt_for(w - 1))
        if pace:
            self.pace(n, cls, vm)
        a("s_cmpk_ge_u32 s%d, %d" % (P_V, max(0, th - o["ap2"])))
        a("s_cbranch_scc1 %s" % lab)
        a("s_waitcnt vmcnt(%d)" % vm.cnt_for(o["ap3"]))
        a.label(lab)

    def pace(self, n, cls, vm=None):
        o, a = self.o, self.a
        if n >= self.opn(cls):
            return
        if o["spat"] == 2 and cls is not None:
            for msk, thr in ((S_NOW, o["wb"] - 2), (S_T0, o["wb"] - 3)):
                if vm.cnt_for(thr) < len(vm.q):
                    a("s_bitcmp1_b64 s[%d:%d], %d" % (msk, msk + 1, n))
                    a.lines.append("    s_cbranch_scc0 1")
                    a.lines.append("    s_waitcnt vmcnt(%d)" % vm.cnt_for(thr))
            return
        if o["spat"] and cls is not None:
            if vm.cnt_for(o["pthr"]) < len(vm.q):
                a("s_bitcmp1_b64 s[%d:%d], %d" % (S_NOW, S_NOW + 1, n))
                a.lines.append("    s_cbranch_scc0 1")
                a.lines.append("    s_waitcnt vmcnt(%d)" % vm.cnt_for(o["pthr"]))
            return
        if o["tpace"]:
            if cls is None or not self.psamp:
                return
            a("s_waitcnt lgkmcnt(0)")
            a("s_sub_u32 s%d, s%d, s%d" % (T0 + 7, S_NOW, S_T0))
            th = self.sched(n - 1, cls)
            a("s_cmpk_lt_u32 s%d, %d" % (T0 + 7, th))
            a.lines.append("    s_cbranch_scc0 4")
            a.lines.append("    s_waitcnt vmcnt(%d)" % vm.cnt_for(o["pthr"]))
            a.lines.append("    s_cmpk_lt_u32 s%d, %d" % (T0 + 7, th - o["tm2"]))
            a.lines.append("    s_cbranch_scc0 1")
            a.lines.append("    s_waitcnt vmcnt(%d)" % vm.cnt_for(o["pthr2"]))
            return
        if not o["pace"] or cls is None or not self.psamp:
            return
        pn = self.psamp
        if n - pn < o["plag"]:
            if not self.pval:
                return
        elif n - pn == o["plag"]:
            vm.wait("pc")
            own = pn - o["pd_" + cls]
            a("v_subrev_u32 v%d, s%d, v%d" % (VPC, S_T0, VPC))
            a("v_cmp_gt_u32_e64 s[%d:%d], %d, v%d" % (T0 + 6, T0 + 7, own - o["pm"] + 1, VPC))
            a("s_bcnt1_i32_b64 s%d, s[%d:%d]" % (S_NOW, T0 + 6, T0 + 7))
            if o["pm2"]:
                a("v_cmp_gt_u32_e64 s[%d:%d], %d, v%d" % (T0 + 6, T0 + 7, own - o["pm2"] + 1, VPC))
                a("s_bcnt1_i32_b64 s%d, s[%d:%d]" % (T0 + 7, T0 + 6, T0 + 7))
                a("s_cmp_ge_u32 s%d, %d" % (T0 + 7, 2 * o["pk2"]))
                a("s_cselect_b32 s%d, 255, s%d" % (S_NOW, S_NOW))
            self.pval = True
        a("s_cmp_ge_u32 s%d, %d" % (S_NOW, 2 * o["pk"]))
        a.lines.append("    s_cbranch_scc0 %d" % (4 if o["pm2"] else 1))
        a.lines.append("    s_waitcnt vmcnt(%d)" % vm.cnt_for(o["pthr"]))
        if o["pm2"]:
            a.lines.append("    s_cmpk_ge_u32 s%d, 255" % S_NOW)
            a.lines.append("    s_cbranch_scc0 1")
            a.lines.append("    s_waitcnt vmcnt(%d)" % vm.cnt_for(o["pthr2"]))

    def setpat(self, r1, r0=None):
        if not self.o["spat"]:
            return
        if self.o["spat"] == 2:
            return self.setpat2(r1, r0)
        def pat(r, add=0):
            d, acc, v = max(0, min(100, self.o["d_" + r] + add)), 50, 0
            for n in range(64):
                acc += d
                if acc >= 100:
                    acc -= 100
                    v |= 1 << n
            return v
        dw = self.o["dw"]
        for h in range(2):
            v1 = (pat(r1, dw) >> (32 * h)) & 0xffffffff
            if r0 is None:
                self.a("s_mov_b32 s%d, 0x%x" % (S_NOW + h, v1))
            else:
                self.a("s_mov_b32 s%d, 0x%x" % (S_NOW + h, (pat(r0, dw) >> (32 * h)) & 0xffffffff))
                self.a("s_cselect_b32 s%d, 0x%x, s%d" % (S_NOW + h, v1, S_NOW + h))
        if self.o["ap"] and self.o["apo"] >= 0:
            assert not dw
            t1 = self.o["t_" + r1]
            t0 = t1 if r0 is None else self.o["t_" + r0]
            if t0 != t1:
                self.a("s_cselect_b32 s%d, %d, %d" % (S_T0, t1, t0) if -16 <= min(t0, t1) and max(t0, t1) <= 64 else "s_cselect_b32 s%d, %d, 0" % (S_T0, t1 - t0))
                if not (-16 <= min(t0, t1) and max(t0, t1) <= 64):
                    self.a("s_add_u32 s%d, s%d, %d" % (S_T0, S_T0, t0))
                self.a("s_add_u32 s%d, s%d, s%d" % (S_T0, S_T0, S_STAMP))
            else:
                self.a("s_add_u32 s%d, s%d, %d" % (S_T0, S_STAMP, t1))
            if self.o["et"]:
                self.a("s_mov_b32 s%d, s%d" % (S_T0 + 1, S_STAMP))
        if dw:
            for h in range(2):
                v1 = (pat(r1, -dw) >> (32 * h)) & 0xffffffff
                if r0 is None:
                    self.a("s_mov_b32 s%d, 0x%x" % (S_T0 + h, v1))
                else:
                    self.a("s_mov_b32 s%d, 0x%x" % (S_T0 + h, (pat(r0, -dw) >> (32 * h)) & 0xffffffff))
                    self.a("s_cselect_b32 s%d, 0x%x, s%d" % (S_T0 + h, v1, S_T0 + h))
            self.a("s_cmp_ge_u32 s3, 4")
            self.a("s_cselect_b64 s[%d:%d], s[%d:%d], s[%d:%d]" % (S_NOW, S_NOW + 1, S_T0, S_T0 + 1, S_NOW, S_NOW + 1))

    def setpat2(self, r1, r0):
        a, o = self.a, self.o
        wb = o["wb"]

        def masks(r, add):
            spec = [int(x) for x in str(o["W_" + r]).split(":")]
            acc, m1, m2 = 5, 0, 0
            for n in range(64):
                W = spec[0]
                for k in range(1, len(spec), 2):
                    if n >= spec[k]:
                        W = spec[k + 1]
                W = max(10 * (wb - 2), min(10 * wb, W + add))
                acc += W % 10
                wi = W // 10
                if acc >= 10:
                    acc -= 10
                    wi += 1
                if wi == wb - 1:
                    m1 |= 1 << n
                if wi <= wb - 2:
                    m2 |= 1 << n
            return [m1 & 0xffffffff, m1 >> 32, m2 & 0xffffffff, m2 >> 32]
        regs = [S_NOW, S_NOW + 1, S_T0, S_T0 + 1]
        if r0 is not None:
            a("s_cselect_b32 s%d, 1, 0" % (T0 + 6))
        var = [(b0, b2) for b2 in range(2 if o["dhi"] else 1) for b0 in range(2 if o["dodd"] else 1)]
        done = a.newlabel("spd")
        if len(var) > 1:
            a("s_getreg_b32 s%d, hwreg(HW_REG_XCC_ID)" % (T0 + 7))
            a("s_and_b32 s%d, s%d, %d" % (T0 + 7, T0 + 7, (1 if o["dodd"] else 0) | (4 if o["dhi"] else 0)))
        for i, (b0, b2) in enumerate(var):
            nxt = a.newlabel("spn")
            if i < len(var) - 1:
                a("s_cmp_lg_u32 s%d, %d" % (T0 + 7, b0 | 4 * b2))
                a("s_cbranch_scc1 %s" % nxt)
            add = b0 * o["dodd"] + b2 * o["dhi"]
            m1 = masks(r1, add)
            if r0 is None:
                for rg, v in zip(regs, m1):
                    a("s_mov_b32 s%d, 0x%x" % (rg, v))
            else:
                a("s_cmp_lg_u32 s%d, 0" % (T0 + 6))
                for rg, v, v0 in zip(regs, m1, masks(r0, add)):
                    a("s_mov_b32 s%d, 0x%x" % (rg, v0))
                    a("s_cselect_b32 s%d, 0x%x, s%d" % (rg, v, rg))
            if i < len(var) - 1:
                a("s_branch %s" % done)
                a.label(nxt)
        a.label(done)

    def ppos(self, n):
        o = self.o
        return o["pace"] and n >= o["p0"] and (n - o["p0"]) % o["pstep"] == 0

    def pstart(self):
        self.psamp = False
        self.pval = None

    def psample(self, n, cls, vm, pub):
        o, a = self.o, self.a
        if o["tpace"]:
            self.psamp = cls is not None and o["tp0"] <= n < o["pend"]
            if self.psamp:
                a("s_memrealtime s[%d:%d]" % (S_NOW, S_NOW + 1))
            return
        if not self.ppos(n):
            return
        assert o["p0"] >= o["kmr"]
        v = VPC if cls else 30
        if cls:
            vm.wait("pc")
        a("s_add_u32 s%d, s%d, %d" % (T0 + 7, S_T0, n - o["pd_" + pub]))
        a("s_mov_b64 exec, 1")
        a("v_mov_b32 v%d, s%d" % (v, T0 + 7))
        a("buffer_store_dword v%d, v%d, s[%d:%d], s%d offen" % (v, VV, R_WS, R_WS + 3, S_NOW + 1))
        a("s_mov_b64 exec, -1")
        vm.issue("ps")
        if cls and n + o["plag"] < 64:
            a("buffer_load_dword v%d, v%d, s[%d:%d], s%d offen sc1" % (v, VR4, R_WS, R_WS + 3, S_T0 + 1))
            vm.issue("pc")
            self.psamp = n

    def kreg(self, p, z):
        return KV + 8 * p + 4 * z

    def vreg(self, idx):
        return VP + 4 * idx if idx < NVP else KV + 8 * (idx - NVP) + 4

    def kload(self, vm, n):
        sl = self.kslot(n)
        p, z = sl >> 1, sl & 1
        u = 4 * (p & 3) + (p >> 2)
        self.a("%s s%d, s%d, %d" % ("s_xor_b32" if self.o["rot"] else "s_add_u32", T0 + 7, S_KV, self.coff(2 * u + z)))
        dup = self.o["kp2"] and n < self.o["kpre"] + self.o["kp2"] and self.o["kpre"]
        if dup:
            self.a("s_bitcmp1_b32 s3, 2")
            self.a("s_cselect_b64 exec, -1, 0")
        self.a("buffer_load_dwordx4 %s, v%d, s[%d:%d], s%d offen nt" % (vr(self.kreg(p, z), 4), VK, R_K, R_K + 3, T0 + 7))
        if dup:
            self.a("s_mov_b64 exec, -1")
        vm.issue("k%d" % sl)
        if self.o["et"] and n >= 8:
            self.ethook(vm, n)
        if self.o["b3p"] and n >= max(1, self.o["kpre"]):
            self.b3hook(n)
        if n % 7 == 0 and n:
            self.stamp(n // 7, 7)
        if n in (8, 16, 24):
            self.stamp(n // 8, 4)
        if n in (0, 3, 4, 7):
            self.stamp({0: 2, 3: 3, 4: 4, 7: 5}[n], 5)

    def ethook(self, vm, n):
        a, o = self.a, self.o
        bc = self.pub == "bc"
        p = o["et_bc"] if bc else (o["et_n"] if self.pub == "n" and o["et_n"] else o["et"])
        sl = self.kslot(31)
        r = self.kreg(sl >> 1, sl & 1)
        assert p + o["etw"] < 31
        if n == p:
            a("v_and_b32 v%d, 7, v0" % (r + 1))
            a("v_lshlrev_b32 v%d, 2, v%d" % (r + 1, r + 1))
            a("s_mov_b32 s%d, 0x%x" % (T0 + 7, ETG + (256 if bc else 0)))
            a("buffer_load_dword v%d, v%d, s[%d:%d], s%d offen%s" % (r, r + 1, R_WS, R_WS + 3, T0 + 7, " sc1" if o["es"] & 1 else ""))
            vm.issue("gs")
            self.etvm = vm
        if n == p + o["etw"]:
            assert self.etvm is vm
            lab = a.newlabel("et")
            vm.wait("gs")
            a("s_sub_u32 s%d, s%d, 300" % (T0 + 7, S_STAMP))
            a("v_subrev_u32 v%d, s%d, v%d" % (r, T0 + 7, r))
            a("v_mov_b32 v%d, 600" % (r + 1))
            a("v_cmp_lt_u32 s[%d:%d], v%d, v%d" % (P_V, P_V + 1, r, r + 1))
            for x in (1, 2, 4):
                self.xred("v_add_u32", r, r + 1, x)
            a("v_readfirstlane_b32 s%d, v%d" % (T0 + 7, r))
            a("s_cmp_eq_u64 s[%d:%d], -1" % (P_V, P_V + 1))
            a("s_cbranch_scc0 %s" % lab)
            a("s_lshr_b32 s%d, s%d, 3" % (T0 + 7, T0 + 7))
            a("s_sub_u32 s%d, s%d, %d" % (T0 + 7, T0 + 7, 300 - o["et0"]))
            a("s_add_u32 s%d, s%d, s%d" % (S_T0, S_T0, T0 + 7))
            a("s_add_u32 s%d, s%d, s%d" % (S_T0 + 1, S_T0 + 1, T0 + 7))
            a.label(lab)

    def b3hook(self, n):
        a, o = self.a, self.o
        if getattr(self, "pub", None) != "m":
            return
        ng, nup = o["ng"], o["nup"]
        items = [(0, i) for i in range(ng)] + [(1, i) for i in range(nup)]
        pos = []
        for k, it in enumerate(items):
            use = max(o["kpre"], o["g_pos"] + k * o["g_step"])
            p = max(o["kpre"], use - o["b3p"])
            if use - p >= o["b3m"]:
                pos.append((p, it))
        if o["b3q"]:
            pos += [(o["b3q"] + i - nup, (1, i)) for i in range(nup, 9)]
        vd = self.vreg(23)
        for k, (p, (mat, i)) in enumerate(pos):
            assert p <= 54
            if p != n:
                continue
            lab = a.newlabel("b3")
            a("s_cmp_eq_u32 s%d, %d" % (P_WQ, k & 7))
            a("s_cbranch_scc0 %s" % lab)
            a.srd(T0 + 4, P_WU if mat else P_WG, 576 * 4608 * 2)
            a("v_mul_u32_u24 v%d, 9216, v0" % (vd + 1))
            a("s_add_u32 s%d, s%d, %d" % (P_V, P_WQ + 1, 64 * 9216 * i))
            a("buffer_load_dword v%d, v%d, s[%d:%d], s%d offen%s" % (vd, vd + 1, T0 + 4, T0 + 7, P_V, " nt" if o["b3n"] else ""))
            a.label(lab)

    def vload(self, vm, idx):
        if self.o["bal"] and idx == 0:
            self.a("v_bfe_u32 v%d, v0, 4, 2" % VK)
            self.a("v_and_b32 v10, 0xf0, v%d" % VV)
            self.a("v_lshlrev_b32 v%d, 2, v%d" % (VK, VK))
            self.a("v_bfe_u32 v%d, s%d, v%d, 4" % (VK, P_K, VK))
            self.a("v_lshl_add_u32 v%d, v%d, 8, v10" % (VK, VK))
        self.a("%s s%d, s%d, %d" % ("s_xor_b32" if self.o["rot"] else "s_add_u32", T0 + 7, S_KV, self.coff(idx)))
        skl = [2, 10, 18, 26][:self.o["sk"]]
        if idx in skl:
            self.a("s_bitcmp0_b32 s2, 0")
            self.a("s_cselect_b64 exec, -1, 0")
            self.a("s_xor_b32 s%d, s%d, 0x400000" % (T0 + 6, T0 + 7))
            self.a("buffer_load_dwordx4 %s, v%d, s[%d:%d], s%d offen nt" % (vr(self.vreg(idx), 4), VK, R_V, R_V + 3, T0 + 6))
            vm.issue("x")
        self.a("buffer_load_dwordx4 %s, v%d, s[%d:%d], s%d offen nt" % (vr(self.vreg(idx), 4), VK if self.o["bal"] else VV, R_V, R_V + 3, T0 + 7))
        if idx in skl:
            self.a("s_mov_b64 exec, -1")
        vm.issue("v%d" % idx)
        if self.o["b3p"]:
            self.b3hook(32 + idx)
        if 32 + idx == self.o["prio"]:
            self.a("s_setprio 0")
        if (32 + idx) % 7 == 0 and idx < 31:
            self.stamp((32 + idx) // 7, 7)
        if idx in (12, 22):
            self.stamp(4 + (idx == 22), 4)

    def vm0(self):
        vm = VM(self.a)
        vm.q = ["k%d" % self.kslot(n) for n in range(self.o["kpre"])] + ["ps"] * self.o["kp2"] + ["ps"] * ((1 if self.o["vt"] else 0) + (1 if self.o["dt"] & 2 else 0))
        return vm

    def kloads(self, vm, n0, n1, w=None, cls=None, pub=None, fl=None):
        self.pstart()
        for n in range(max(n0, self.o["kpre"]), n1):
            if fl:
                self.flow(n, cls, vm, w, kn=fl)
            else:
                if w:
                    vm.window(w)
                self.pace(n, cls, vm)
            self.kload(vm, n)
            self.psample(n, cls, vm, self.pub)
        if cls:
            vm.wait("pc")
        self.pstart()

    EW, EB, ED, EX, ER = 160, 196, 232, 236, 246
    EVB, EV8, EV4, EVD, EVTA, EVTB, EVP, EPW, EPR = 16, 17, 18, 19, 20, 21, 22, 23, 24

    def m_part(self, vm, k0, k1, k2, first):
        a = self.a
        W, B, D, X, C = self.EW, self.EB, self.ED, self.EX, self.ER
        VB_, V8, V4, VD, VTA, VTB, VPB = self.EVB, self.EV8, self.EV4, self.EVD, self.EVTA, self.EVTB, self.EVP
        a("s_mul_i32 s%d, s3, 1152" % (T0 + 2))
        a.srd(R_B, P_C, 8 * 576 * 2)
        self.row_in(C, R_B, "s%d" % (T0 + 2))
        for _ in range(3):
            vm.issue("c")
        a.srd(R_A, P_WM, 576 * 3456 * 2)
        self.dma64_addr(VD, 6912, 12)
        a("s_mul_i32 s%d, s3, %d" % (T0 + 1, 8 * 6912))
        a("s_lshl_b32 s%d, s%d, 7" % (T0 + 3, S_E0))
        a("s_add_u32 s%d, s%d, s%d" % (T0 + 1, T0 + 1, T0 + 3))
        self.dma64(VD, R_A, 6912, T0 + 1, S_E1)
        for _ in range(9):
            vm.issue("wm")
        self.kloads(vm, k0, k1)
        if first:
            self.tagwait(vm)
        a("v_lshrrev_b32 v12, 4, v0")
        a("v_mul_u32_u24 v12, %d, v12" % REP)
        a("v_and_b32 v13, 15, v0")
        a("v_lshl_add_u32 v%d, v13, 4, v12" % VPB)
        a("s_mul_i32 s%d, s%d, 57" % (T0 + 1, S_E0))
        a("s_lshr_b32 s%d, s%d, 9" % (T0 + 1, T0 + 1))
        a("s_mul_i32 s%d, s%d, 9" % (T0 + 2, T0 + 1))
        a("s_sub_u32 s%d, s%d, s%d" % (T0 + 2, S_E0, T0 + 2))
        a("s_mul_i32 s%d, s%d, %d" % (T0 + 3, T0 + 1, 4 * REP))
        a("s_lshl_b32 s%d, s%d, 8" % (T0 + 2, T0 + 2))
        a("s_add_u32 s%d, s%d, s%d" % (T0 + 3, T0 + 3, T0 + 2))
        a("s_mul_i32 s%d, s3, 2304" % (T0 + 2))
        a("s_add_u32 s%d, s%d, s%d" % (T0 + 3, T0 + 3, T0 + 2))
        a("s_add_u32 s%d, s%d, 0x%x" % (T0 + 3, T0 + 3, MG))
        a("s_mov_b32 s%d, 0" % (T0 + 2))
        a("s_cmp_eq_u32 s%d, 1" % (T0 + 1))
        a("s_cselect_b32 s%d, 1.0, s%d" % (T0 + 2, T0 + 2))
        a("s_cmp_eq_u32 s%d, 4" % (T0 + 1))
        a("s_cselect_b32 s%d, 1.0, s%d" % (T0 + 2, T0 + 2))
        if self.o["exp"] & 16:
            self.kloads(vm, k1, k2, self.o["w_e"])
            return k2
        self.stamp(1, 6)
        vm.wait("c")
        self.stamp(2, 6)
        for i in range(5):
            self.unpk(X, X + 1, C + i)
            self.silu(X, X + 2, X + 4, X + 6)
            self.silu(X + 1, X + 3, X + 5, X + 7)
            a("v_cvt_pk_bf16_f32 v%d, v%d, v%d" % (C + i, X, X + 1))
        self.row_write(V8, V4, C)
        self.stamp(3, 6)
        ms = self.o["ms"]
        kx = [k2 if first else k2 - ms]
        self.kloads(vm, k1, kx[0], self.o["w_e"])
        kend = kx[0] + ms

        def ks():
            if kx[0] < kend:
                self.kload(vm, kx[0])
                kx[0] += 1
        vm.wait("wm")
        self.stamp(4, 6)
        ks()
        a("s_waitcnt lgkmcnt(0)")
        a("s_barrier")
        self.stamp(5, 6)
        self.stamp(1, 1)
        ks()
        self.tr64(W, VTA, VTB)
        ks()
        self.gemv9(W, B, D, VB_)
        ks()
        self.fixup(D, X)
        self.rnd(X, X)
        a("v_add_f32 v%d, s%d, v%d" % (X, T0 + 2, X))
        self.pub_stage(X, X + 4)
        nr = self.o["rc" if first else "rl"]
        if self.o["dg"] and not first:
            assert nr == 1
            a("s_sub_u32 s%d, s%d, 27" % (T0, S_E0))
            a("s_cmp_lt_u32 s%d, 18" % T0)
            a("s_cselect_b32 s%d, 0, s%d" % (P_WQ, T0 + 3))
            a("s_cselect_b64 exec, 0xffff, 0")
        elif nr < 4:
            a("s_bfm_b64 exec, %d, 0" % (16 * nr))
        a("buffer_store_dwordx4 %s, v%d, s[%d:%d], s%d offen sc1" % (vr(X + 4, 4), VPB, R_WS, R_WS + 3, T0 + 3))
        if nr < 4:
            a("s_mov_b64 exec, -1")
        self.stamp(2, 1)
        assert kx[0] == kend
        return kend

    def q_part(self, vm):
        a = self.a
        o = self.o
        W, B, D, X0, XR = self.EW, self.EB, self.ED, self.EX, self.ER
        VB_, V8, V4, VD, VTA, VTB, VPB = self.EVB, self.EV8, self.EV4, self.EVD, self.EVTA, self.EVTB, self.EVP
        a("s_mul_i32 s%d, s3, 1152" % (T0 + 2))
        a.srd(R_B, P_X, 8 * 576 * 2)
        self.row_in(XR, R_B, "s%d" % (T0 + 2))
        for _ in range(3):
            vm.issue("x")
        a.srd(R_A, P_WQ, 576 * 4096 * 2)
        self.dma64_addr(VD, 8192, 12)
        a("s_lshl3_add_u32 s%d, s%d, s%d" % (S_E2, S_X, S_R))
        a("s_lshl_b32 s%d, s3, 16" % (T0 + 1))
        a("s_lshl_b32 s%d, s%d, 7" % (T0 + 3, S_E2))
        a("s_add_u32 s%d, s%d, s%d" % (T0 + 1, T0 + 1, T0 + 3))
        qil = o["qil"]
        kn = [o["kpre"]]
        wn = [0]

        def mix(nk, w):
            while kn[0] < nk:
                while wn[0] < 9 and o["qpos"] + (wn[0] * qil) // 10 <= kn[0]:
                    if w:
                        vm.window(w)
                    a("s_add_u32 m0, s%d, %d" % (S_E1, 8192 * wn[0]))
                    a("s_add_u32 s%d, s%d, %d" % (T0, S_E0, 64 * 8192 * wn[0]))
                    a("buffer_load_dwordx4 v%d, s[%d:%d], s%d offen nt lds" % (VD, R_A, R_A + 3, T0))
                    vm.issue("wq")
                    wn[0] += 1
                if w:
                    vm.window(w)
                self.kload(vm, kn[0])
                kn[0] += 1
        if qil:
            a("s_mov_b32 s%d, s%d" % (S_E0, T0 + 1))
            mix(max(o["kq0"], o["kpre"] + 1), None)
        else:
            self.dma64(VD, R_A, 8192, T0 + 1, S_E1)
            for _ in range(9):
                vm.issue("wq")
            self.kloads(vm, 0, o["kq0"])
        self.tagwait(vm)
        if o["ql"]:
            a("s_and_b32 s%d, s%d, 1" % (T0 + 2, S_E2))
            a("s_lshl_b32 s%d, s%d, 8" % (S_E2, S_E2))
            a("s_lshl_b32 s%d, s%d, 7" % (T0 + 2, T0 + 2))
            a("s_sub_u32 s%d, s%d, s%d" % (S_E2, S_E2, T0 + 2))
        else:
            a("s_lshl_b32 s%d, s%d, 8" % (S_E2, S_E2))
        a("s_lshl_b32 s%d, s3, 14" % (T0 + 2))
        a("s_add_u32 s%d, s%d, s%d" % (S_E2, S_E2, T0 + 2))
        a("s_add_u32 s%d, s%d, 0x%x" % (S_E2, S_E2, QG))
        a("s_and_b32 s%d, s%d, %d" % (T0 + 2, S_X, o["rc"] - 1))
        a("s_mul_i32 s%d, s%d, %d" % (T0 + 2, T0 + 2, REP))
        a("s_mul_i32 s%d, s3, 2304" % (T0 + 3))
        a("s_add_u32 s%d, s%d, s%d" % (T0 + 2, T0 + 2, T0 + 3))
        a("s_add_u32 s%d, s%d, 0x%x" % (T0 + 2, T0 + 2, MG))
        a("s_add_u32 s%d, s%d, %d" % (T0 + 3, T0 + 2, 4 * REP))
        if o["exp"] & 16:
            mix(o["kqa"], o["w_q"])
            return o["kqa"]
        self.stamp(1, 6)
        if qil:
            mix(kn[0] + 2, o["w_q"])
        vm.wait("x")
        self.stamp(2, 6)
        X = [X0 + 2 * i for i in range(5)]
        for i in range(5):
            self.unpk(X[i], X[i] + 1, XR + i)
        self.row_stats([XR + i for i in range(5)], 10)
        self.ln_apply(X, 10)
        self.stamp(3, 6)
        if qil:
            mix(o["kqa"], o["w_q"])
            self.stamp(4, 6)
            assert wn[0] == 9
        else:
            vm.wait("wq")
            a("s_barrier")
            self.tr64(W, VTA, VTB)
            self.stamp(3, 1)
            self.kloads(vm, o["kq0"], o["kqa"], o["w_e"])
        SA, CA = B, B + 10
        lds = self.row_loads(SA, "s%d" % (T0 + 2)) + self.row_loads(CA, "s%d" % (T0 + 3))
        if o["lq"] & 1:
            a("s_and_b32 s%d, s0, 0xffffff80" % P_WO)
            a("s_sub_u32 s%d, s%d, 1024" % (P_WO, P_WO))
            a("buffer_load_dword v28, v%d, s[%d:%d], s%d offen sc1" % (VR4, R_WS, R_WS + 3, P_WO))
            vm.issue("ps")
        for l in lds:
            self.ld_ws(*l)
            vm.issue("mod")
        self.kloads(vm, o["kqa"], o["kqc"])
        if qil:
            vm.wait("wq")
            self.stamp(5, 6)
            a("s_barrier")
            self.tr64(W, VTA, VTB)
            self.stamp(3, 1)
        kx = [o["kqc"]]

        def ks():
            if kx[0] < o["kqc"] + o["qs"]:
                self.kload(vm, kx[0])
                kx[0] += 1
        ks()
        self.gpoll(lds, [B + 1 + 2 * i for i in range(10)], 10, 11, first_issued=True, vm=vm, vtag="mod")
        self.stamp(4, 1)
        self.cstamp(1)
        ks()
        for i in range(5):
            self.unpk(CA + 2 * i, CA + 2 * i + 1, CA + 2 * i)
        for i in range(5):
            self.unpk(SA + 2 * i, SA + 2 * i + 1, SA + 2 * i)
        self.modulate(X, [CA + 2 * i for i in range(5)], [SA + 2 * i for i in range(5)], [XR + i for i in range(5)])
        self.row_write(V8, V4, XR)
        ks()
        a("s_waitcnt lgkmcnt(0)")
        a("s_barrier")
        ks()
        self.gemv9(W, B, D, VB_)
        ks()
        self.fixup(D, X0)
        if o["ql"]:
            a("v_and_b32 v12, 1, v0")
            a("v_lshlrev_b32 v12, 8, v12")
            a("v_bfe_u32 v13, v0, 1, 3")
            a("v_lshl_add_u32 v12, v13, 4, v12")
        ks()
        self.pub_stage(X0, X0 + 4)
        if o["lq"] & 1:
            lab = a.newlabel("lq")
            a("v_cmp_eq_u32 vcc, s1, v28")
            a("s_add_u32 s%d, s%d, 0x%x" % (T0 + 1, S_E2, FAST))
            a("s_cmp_eq_u64 vcc, -1")
            a("s_mov_b64 exec, 0xffff")
            a("buffer_store_dwordx4 %s, v12, s[%d:%d], s%d offen" % (vr(X0 + 4, 4), R_WS, R_WS + 3, T0 + 1))
            a("s_cbranch_scc1 %s" % lab)
        a("s_mov_b64 exec, 0xffff")
        a("buffer_store_dwordx4 %s, v%d, s[%d:%d], s%d offen sc1" % (vr(X0 + 4, 4), 12 if o["ql"] else VV, R_WS, R_WS + 3, S_E2))
        if o["lq"] & 1:
            a.label(lab)
        a("s_mov_b64 exec, -1")
        self.stamp(5, 1)
        return kx[0]

    def early_addr(self):
        a = self.a
        self.act_addr(self.EVB, self.EV8, self.EV4, 12)
        self.tr64_addr(self.EVTA, 12, 13)
        self.pub_addr(self.EPW, self.EPR, 12)
        a("v_add_u32 v%d, 32768, v%d" % (self.EVTB, self.EVTA))
        a("s_lshl_b32 s%d, s3, 10" % S_E1)

    def early_m(self):
        a = self.a
        o = self.o
        kst = o["kmr"] + o["km2"]
        self.early_addr()
        a("s_mov_b32 s%d, s2" % S_E0)
        a("s_cmp_ge_u32 s%d, 18" % S_E0)
        a("s_cbranch_scc1 .Lm_rel")
        kp = o["kpre"]
        if o["wf"] & 1:
            o["kpre"] = 0
        vm = self.vm0()
        ke = self.m_part(vm, 0, o["km"], max(o["km"], o["km1"]), True)
        self.kloads(vm, ke, kst, o["w_e"])
        o["kpre"] = kp
        a("s_branch .Le_done")
        a.label(".Lm_rel")
        vm = self.vm0()
        self.kloads(vm, 0, o["kmr"], o["w_m"], "m" if o["spat"] or o["tpace"] else None)
        self.tagwait(vm)
        a("s_cmp_lt_u32 s%d, 54" % S_E0)
        a("s_cbranch_scc1 .Lmr_part")
        self.kloads(vm, o["kmr"], kst, o["w_m"], "m")
        a("s_branch .Le_done")
        a.label(".Lmr_part")
        vm = VM(a)
        self.m_part(vm, o["kmr"], o["kmr"], kst, False)
        a.label(".Le_done")
        return kst

    def attention(self, cls, sprinkle, kstart=0, hooks={}):
        a = self.a
        o = self.o
        vm = VM(a)
        for n in range(kstart):
            vm.q.append("k%d" % self.kslot(n))
            if self.ppos(n):
                vm.q.append("ps")
        if cls == "bc":
            vm.q += ["ps"] * (o["kp2"] + (1 if o["vt"] else 0) + (1 if o["dt"] & 2 else 0) + (o["dt"] & 1))
        if cls == "bc" and o["xt"]:
            vm.q.append("ps")
        self.pstart()
        w = o["w_" + cls]
        VQ, VML, VMP = 7, 8, 9
        a("v_and_b32 v%d, 1, v0" % VML)
        a("v_lshlrev_b32 v%d, 8, v%d" % (VML, VML))
        a("v_and_b32 v%d, 0x3c, v0" % VMP)
        a("v_lshl_add_u32 v%d, v%d, 2, v%d" % (VMP, VMP, VML))
        if o["ql"]:
            a("v_add_u32 v%d, v%d, v%d" % (VQ, VMP, VML))
        else:
            a("v_lshlrev_b32 v%d, 1, v%d" % (VQ, VMP))
        a("v_and_b32 v%d, 0x3c, v0" % VMP)
        a("v_lshrrev_b32 v%d, 4, v%d" % (VML, VML))
        if o["mlc"]:
            a("v_and_b32 v%d, 4, v0" % VMP)
            a("v_lshl_add_u32 v%d, v%d, 3, v%d" % (VMP, VMP, VML))
        else:
            a("v_lshl_add_u32 v%d, v%d, %d, v%d" % (VMP, VMP, o["mls"] - 2, VML))
        a("s_lshl_b32 s%d, s%d, 14" % (T0 + 2, S_B))
        a("s_lshl_b32 s%d, s%d, 10" % (T0 + 3, S_HKV))
        a("s_add_u32 s%d, s%d, s%d" % (T0 + 2, T0 + 2, T0 + 3))
        a("s_add_u32 s%d, s%d, 0x%x" % (T0 + 2, T0 + 2, QG))
        a("s_lshl4_add_u32 s%d, s%d, s%d" % (T0 + 3, S_B, S_HKV))
        a("s_lshl_b32 s%d, s%d, %d" % (T0 + 3, T0 + 3, 7 if o["mlc"] else 11))
        a("s_add_u32 s%d, s%d, 0x%x" % (T0 + 3, T0 + 3, MLG))
        qloads = [(QR + 4 * z, 4, VQ, "s%d" % (T0 + 2), (256 if o["ql"] else 16) * z) for z in range(2)]
        qtags = [QR + 1 + 2 * i for i in range(4)]
        nv = [0]
        gs = [[int(y) for y in x.split(":")] for x in str(o["gs"]).split(",") if x]
        GA, GB, GF, GR = P_K, P_K + 1, P_V, KV + 64
        gn = o["gsn"]
        if gs:
            a("s_lshr_b32 s%d, s2, 6" % GA)
            a("s_lshl2_add_u32 s%d, s%d, s%d" % (GA, S_B, GA))
            a("s_lshl3_add_u32 s%d, s%d, s%d" % (GA, GA, S_X))
            a("s_lshl_b32 s%d, s3, 8" % GB)
            a("s_add_u32 s%d, s%d, s%d" % (GA, GA, GB))
            a("s_lshl2_add_u32 s%d, s%d, 0x%x" % (GA, GA, GSG))
            a("s_and_b32 s%d, s%d, 0x%x" % (GB, GA, {1: 0xffffff80, 2: 0xfffffe00, 4: 0xfffffc00}[gn]))
            if gn == 1:
                a("s_sub_u32 s%d, s%d, 1024" % (GB, GB))

        def sensor(n):
            if cls != "n" or n != o["cs"]:
                return
            assert n < qa
            lab = a.newlabel("sen")
            a("s_cmp_eq_u32 s3, s%d" % S_R)
            a("s_cbranch_scc0 %s" % lab)
            a("s_add_u32 s%d, s%d, s%d" % (P_V, P_V, S_T0 + 1 if o["et"] else S_STAMP))
            a("s_sub_u32 s%d, s%d, %d" % (P_V, P_V, self.apsched(n, cls) + o["apo"]))
            a("s_lshl3_add_u32 s%d, s%d, s%d" % (T0 + 7, S_R, S_X))
            a("s_lshl3_add_u32 s%d, s%d, 0x%x" % (T0 + 7, T0 + 7, CAL))
            a("v_mov_b32 v10, s%d" % P_V)
            a("v_mov_b32 v11, s%d" % S_TAG)
            a("s_mov_b64 exec, 1")
            a("buffer_store_dwordx2 v[10:11], v%d, s[%d:%d], s%d offen sc1" % (VV, R_WS, R_WS + 3, T0 + 7))
            a("s_mov_b64 exec, -1")
            a.label(lab)

        def gsload(k):
            a("s_add_u32 s%d, s%d, %d" % (GF + 1, GB, 8192 * k))
            return (GR, gn, {1: VR4, 2: VR8, 4: VV}[gn], "s%d" % (GF + 1), 0)

        def vissue():
            idx = nv[0]
            if idx >= 32:
                return
            for k, (ga, gb, gc) in enumerate(gs):
                if o["gsk"]:
                    if 32 + idx == gc:
                        vm.wait("gs")
                        self.tagcheck([GR + i for i in range(gn)], 16, 17)
                        a("s_bcnt0_i32_b64 s%d, vcc" % GF)
                    if gc <= 32 + idx < gc + o["gsl"]:
                        a("s_cmp_ge_u32 s%d, %d" % (GF, o["gsk"]))
                        a.lines.append("    s_cbranch_scc0 1")
                        a.lines.append("    s_waitcnt vmcnt(%d)" % vm.cnt_for(o["gst"]))
                elif 32 + idx == gc:
                    self.gpoll([(GR, gn, {1: VR4, 2: VR8, 4: VV}[gn], "s%d" % (GF + 1), 0)], [GR + i for i in range(gn)], 16, 17, sleep=o["psleep"], first_issued=True, vm=vm, vtag="gs")
            crd = max(qc + 6, o["crd"])
            if o["cs"] and 32 + idx == crd + o["cru"]:
                lab = a.newlabel("cal")
                vm.wait("gs")
                a("v_cmp_eq_u32 vcc, s%d, v%d" % (S_TAG, GR + 1))
                a("v_subrev_u32 v16, s%d, v%d" % (S_T0 + 1 if o["et"] else S_STAMP, GR))
                a("v_cvt_f32_i32 v16, v16")
                a("v_cndmask_b32 v16, 0, v16, vcc")
                a("s_bcnt1_i32_b64 s%d, vcc" % P_V)
                for x in (1, 2, 4, 8, 16, 32):
                    self.xred("v_add_f32", 16, 17, x)
                a("s_cmp_lt_u32 s%d, 32" % P_V)
                a("s_cbranch_scc1 %s" % lab)
                a("v_cvt_f32_u32 v17, s%d" % P_V)
                a("v_rcp_f32 v17, v17")
                a("v_mul_f32 v16, v16, v17")
                if o["cg"] != 10:
                    a("v_mul_f32 v16, %s, v16" % fhex(o["cg"] / 10.0))
                a("v_max_f32 v16, %s, v16" % fhex(o["clo"]))
                a("v_min_f32 v16, %s, v16" % fhex(o["chi"]))
                a("v_cvt_i32_f32 v16, v16")
                a("v_readfirstlane_b32 s%d, v16" % P_V)
                a("s_add_u32 s%d, s%d, %d" % (S_T0, S_T0, o["cal0"]))
                a("s_add_u32 s%d, s%d, s%d" % (S_T0, S_T0, P_V))
                a.label(lab)
            self.flow(32 + idx, cls, vm, o["opn_w"] if 32 + idx >= self.opn(cls) else w)
            self.vload(vm, idx)
            sensor(32 + idx)
            if o["cs"] and 32 + idx == crd:
                a("s_mov_b32 s%d, 0x%x" % (T0 + 7, CAL))
                a("buffer_load_dwordx2 %s, v%d, s[%d:%d], s%d offen%s" % (vr(GR, 2), VR8, R_WS, R_WS + 3, T0 + 7, " sc1" if o["es"] & 2 else ""))
                vm.issue("gs")
            for k, (ga, gb, gc) in enumerate(gs):
                assert ga > qc + 5 and gb > qc + 5 and gc > gb
                if 32 + idx == ga:
                    a("s_add_u32 s%d, s%d, %d" % (T0 + 7, GA, 8192 * k))
                    a("s_mov_b64 exec, 1")
                    a("buffer_store_dword v22, v%d, s[%d:%d], s%d offen sc1" % (VV, R_WS, R_WS + 3, T0 + 7))
                    a("s_mov_b64 exec, -1")
                    vm.issue("ps")
                if 32 + idx == gb:
                    l = gsload(k)
                    if gn == 1:
                        a("buffer_load_dword v%d, v%d, s[%d:%d], %s offen sc1" % (l[0], l[2], R_WS, R_WS + 3, l[3]))
                    else:
                        self.ld_ws(*l)
                    vm.issue("gs")
            self.psample(32 + idx, cls, vm, cls)
            nv[0] += 1
            spr(32 + idx)

        def prew():
            lab = a.newlabel("pw")
            a("s_cmp_lg_u32 s3, 7")
            a("s_cbranch_scc1 %s" % lab)
            a("v_lshrrev_b32 v29, 5, v0")
            a("v_lshlrev_b32 v29, 13, v29")
            a("v_and_b32 v30, 31, v0")
            a("v_lshl_add_u32 v29, v30, 4, v29")
            a("s_lshl4_add_u32 s%d, s%d, s%d" % (T0, S_HKV, S_B))
            a("s_lshl1_add_u32 s%d, s%d, s%d" % (T0, T0, S_HALF))
            a("s_lshl_b32 s%d, s%d, 9" % (T0, T0))
            a("s_add_u32 s%d, s%d, 0x%x" % (T0, T0, OG + FAST))
            a("v_not_b32 v31, s%d" % S_TAG)
            a("buffer_store_dwordx4 v[28:31], v29, s[%d:%d], s%d offen" % (R_WS, R_WS + 3, T0))
            a.label(lab)

        def spr(n):
            if o["pw"] & 1 and n == 54:
                prew()
            if o["tw"] & 2 and n == max(kstart, o["tw1"]):
                self.touch(cls[0] + "1", list(range(8)) + ([0] if cls == "n" else []))
            if o["tw"] & 2 and n == o["tw2"] and cls != "n":
                self.touch(cls[0] + "2", list(range(4)))
            for f in sprinkle.get(n, []):
                if getattr(f, "free", 0):
                    f()
                    for _ in range(f.free):
                        vm.issue("ps")
                    continue
                if o["apsp"]:
                    self.flow(n + 1, cls, vm, w, False)
                else:
                    vm.window(o["opn_w"] if n >= self.opn(cls) else w)
                f()
                vm.issue("w")
            if n == 63:
                for f in sprinkle.get(64, []):
                    if o["w_late"]:
                        vm.window(o["w_late"])
                    f()
                    vm.issue("wl")

        qa, qc = o["qa_" + cls], o["qc_" + cls]
        assert kstart <= qa <= qc < 32 + NVP and qc >= 31
        for n in range(kstart, qc + 1):
            if n < 32:
                self.flow(n, cls, vm, w)
                self.kload(vm, n)
                sensor(n)
                self.psample(n, cls, vm, cls)
                spr(n)
            else:
                vissue()
            if o["lq"] and n == o["xtp"]:
                a("s_and_b32 s0, s0, 0xffffff80")
                a("s_sub_u32 s0, s0, 1024")
                a("buffer_load_dword v28, v%d, s[%d:%d], s0 offen sc1" % (VR4, R_WS, R_WS + 3))
                vm.issue("xt")
            if o["lq"] and n == qa:
                assert kstart <= o["xtp"] <= qa - 4 and not o["qsh"] and QG & FAST == 0 and MLG & FAST == 0
                vm.wait("xt")
                a("v_cmp_eq_u32 vcc, s1, v28")
                a("s_cmp_eq_u64 vcc, -1")
                a("s_cselect_b32 s0, 0x%x, 0" % FAST)
                if o["lq"] & 1:
                    a("s_add_u32 s%d, s%d, s0" % (T0 + 2, T0 + 2))
            if n == 31:
                self.stamp(6)
            if n == qa and o["qsh"]:
                assert o["mlc"] and o["ql"]
                lab = a.newlabel("qs")
                a("v_mov_b32 v10, %d" % (L_ML + 132))
                a("v_mov_b32 v11, 1")
                a("s_mov_b64 exec, 1")
                a("ds_add_rtn_u32 v11, v10, v11")
                a("s_mov_b64 exec, -1")
                a("s_waitcnt lgkmcnt(0)")
                a("v_readfirstlane_b32 s%d, v11" % (T0 + 5))
                a("s_cmp_lg_u32 s%d, 0" % (T0 + 5))
                a("s_cbranch_scc1 %s" % lab)
                for l in qloads:
                    self.ld_ws(*l)
                a.label(lab)
                qmark = vm.total
            elif n == qa and not o["exp"] & 4:
                for l in qloads:
                    self.ld_ws(*l)
                    vm.issue("q")
        qs_ = 2
        if o["qsh"]:
            rd = a.newlabel("qr"); ok = a.newlabel("qo")
            a("v_and_b32 v12, 1, v0")
            a("v_and_b32 v13, 0x3c, v0")
            a("v_lshlrev_b32 v12, 8, v12")
            a("v_lshl_add_u32 v12, v13, 2, v12")
            a("v_add_u32 v12, %d, v12" % L_Q)
            a("v_mov_b32 v13, %d" % (L_ML + 136))
            a("s_cmp_lg_u32 s%d, 0" % (T0 + 5))
            a("s_cbranch_scc1 %s" % rd)
            vq = VM(a)
            vq.q = ["q"] + ["x"] * (vm.total - qmark)
            self.gpoll(qloads, qtags, 10, 11, sleep=o["psleep"], first_issued=True, vm=vq, vtag="q")
            for k in range(1, 4):
                a("v_mov_b32 v%d, v%d" % (QR + k, QR + 2 * k))
            a("v_mov_b32 v10, 1")
            a("ds_write_b128 v12, %s" % vr(QR, 4))
            a("ds_write_b32 v13, v10")
            a("s_branch %s" % ok)
            a.label(rd)
            a("ds_read_b32 v10, v13")
            a("ds_read_b128 %s, v12" % vr(QR, 4))
            a("s_waitcnt lgkmcnt(0)")
            a("v_readfirstlane_b32 s%d, v10" % (T0 + 5))
            a("s_cmp_lg_u32 s%d, 0" % (T0 + 5))
            a("s_cbranch_scc1 %s" % ok)
            a("s_sub_u32 s%d, s%d, 1" % (S_BUD, S_BUD))
            a("s_cbranch_scc1 .Lexit")
            a("s_sleep 1")
            a("s_branch %s" % rd)
            a.label(ok)
            qs_ = 1
        elif not o["exp"] & 4:
            self.gpoll(qloads, qtags, 10, 11, sleep=o["psleep"], first_issued=True, vm=vm, vtag="q", alt=T0 + 2 if o["lq"] & 1 else None)
        self.stamp(7)
        self.cstamp(2)
        B0, B1 = QR + 8, QR + 12
        a("s_mov_b32 vcc_lo, 0xcccccccc")
        a("s_mov_b32 vcc_hi, 0xcccccccc")
        for k in range(4):
            a("v_cndmask_b32_e64 v%d, v%d, 0, vcc" % (B0 + k, QR + qs_ * k))
        for k in range(4):
            a("v_cndmask_b32_e32 v%d, 0, v%d, vcc" % (B1 + k, QR + qs_ * k))
        S, VMX = 10, 14

        def dreg(p):
            return QR if p == 0 else self.kreg(p - 1, 0)

        def red(stage, p):
            D, b0, s = dreg(p), p >> 2, S + (p & 3)
            a("v_add_f32_dpp v%d, v%d, v%d row_ror:%d row_mask:0xf bank_mask:0x%x" % (
                s, D + ((b0 + stage + 1) & 3), D + b0 if stage == 0 else s, 12 - 4 * stage, 1 << b0))
        vm.wait("k0")
        self.mfma(dreg(0), self.kreg(0, 0), B0, None)
        for p in range(16 + 5):
            if p < 15:
                vm.wait("k%d" % (2 * p + 2))
                self.mfma(dreg(p + 1), self.kreg(p + 1, 0), B0, None)
            if p < 16:
                vm.wait("k%d" % (2 * p + 1))
                self.mfma(dreg(p), self.kreg(p, 1), B1, dreg(p))
            for stage in range(3):
                pp = p - 3 - stage
                if 0 <= pp < 16:
                    red(stage, pp)
            if p % o["qkv"] == o["qkv"] - 1 and nv[0] - NVP <= p:
                vissue()
        a("s_mov_b32 s%d, %s" % (T0 + 4, SCALE))
        a("s_mov_b32 s%d, %s" % (T0 + 5, SCALE))
        for u in (0, 2):
            self.rnd2(S + u)
        for u in (0, 2):
            a("v_pk_mul_f32 %s, %s, s[%d:%d]" % (vr(S + u, 2), vr(S + u, 2), T0 + 4, T0 + 5))
        for u in (0, 2):
            self.rnd2(S + u)
        a("v_max_f32 v%d, v%d, v%d" % (VMX, S, S + 1))
        a("v_max3_f32 v%d, v%d, v%d, v%d" % (VMX, VMX, S + 2, S + 3))
        a("s_mov_b32 s%d, %s" % (T0 + 4, LOG2E))
        MS = 20
        a("v_mov_b32 v%d, s%d" % (MS + 2, S_TAG))
        a("v_mov_b32 v%d, s%d" % (MS + 3, S_TAG))
        for x in (2, 4, 8, 16, 32):
            self.xred("v_max_f32", VMX, 15, x)
        if o["sv"] >= 1:
            vissue()
        a("v_mul_f32 v15, 0xbfb8aa3b, v%d" % VMX)
        for u in range(4):
            a("v_fma_f32 v%d, v%d, s%d, v15" % (S + u, S + u, T0 + 4))
        for u in range(4):
            a("v_exp_f32 v%d, v%d" % (S + u, S + u))
        a("v_mov_b32 v%d, v%d" % (MS, VMX))
        a("v_pk_add_f32 v[16:17], %s, %s" % (vr(S, 2), vr(S + 2, 2)))
        a("v_add_f32 v%d, v16, v17" % (MS + 1))
        if o["mlc"]:
            a("s_lshl_b32 s%d, s%d, 5" % (T0 + 4, S_HALF))
            a("s_lshl_b32 s%d, s3, 4" % (T0 + 5))
            a("s_add_u32 s%d, s%d, %d" % (T0 + 5, T0 + 5, L_ML))
            a("v_add_u32 v16, s%d, v%d" % (T0 + 5, VR8))
            a("v_mov_b32 v17, %d" % (L_ML + 128))
            a("v_mov_b32 v18, 1")
        else:
            a("s_lshl3_add_u32 s%d, s%d, s3" % (T0 + 4, S_HALF))
            a("s_lshl_b32 s%d, s%d, %d" % (T0 + 4, T0 + 4, o["mls"]))
        a("s_add_u32 s%d, s%d, s%d" % (T0 + 4, T0 + 4, T0 + 3))
        for x in (2, 4, 8, 16, 32):
            self.xred("v_add_f32", MS + 1, 15, x)
        if o["sv"] >= 2:
            vissue()
        if o["mlc"]:
            lab = a.newlabel("mlc")
            a("s_mov_b64 exec, 3")
            a("ds_write_b64 v16, %s" % vr(MS, 2))
            a("s_mov_b64 exec, 1")
            a("ds_add_rtn_u32 v18, v17, v18")
            a("s_mov_b64 exec, -1")
            a("v_and_b32 v16, 0x78, v%d" % VR8)
            a("v_or_b32 v16, %d, v16" % L_ML)
            a("s_waitcnt lgkmcnt(0)")
            a("v_readfirstlane_b32 s%d, v18" % (T0 + 5))
            a("s_cmp_eq_u32 s%d, 7" % (T0 + 5))
            a("s_cbranch_scc0 %s" % lab)
            a("ds_read_b64 v[18:19], v16")
            a("s_waitcnt lgkmcnt(0)")
            a("v_mov_b32 v%d, v18" % MS)
            for x in (2, 4, 8):
                self.xred("v_max_f32", MS, 15, x)
            a("v_sub_f32 v18, v18, v%d" % MS)
            a("v_mul_f32 v18, %s, v18" % LOG2E)
            a("v_exp_f32 v18, v18")
            a("v_mul_f32 v%d, v18, v19" % (MS + 1))
            for x in (2, 4, 8):
                self.xred("v_add_f32", MS + 1, 15, x)
            a("s_mov_b64 exec, 3")
            if o["lq"] & 2:
                assert o["nosl"] & 1
                self.store2(MS, VV, T0 + 4)
            else:
                a("buffer_store_dwordx4 %s, v%d, s[%d:%d], s%d offen sc1" % (vr(MS, 4), VV, R_WS, R_WS + 3, T0 + 4))
            a("s_mov_b64 exec, -1")
            a.label(lab)
            if o["lq"] & 2:
                a("s_add_u32 s%d, s%d, s0" % (T0 + 3, T0 + 3))
        else:
            a("s_mov_b64 exec, 0x%x" % ((1 << (1 << (o["mls"] - 4))) - 1))
            if not o["exp"] & 2:
                a("buffer_store_dwordx4 %s, v%d, s[%d:%d], s%d offen sc1" % (vr(MS, 4), VV, R_WS, R_WS + 3, T0 + 4))
                vm.issue("st")
            a("s_mov_b64 exec, -1")
        self.stamp(8)
        ML = 24
        mll = [(ML, 4, VMP, "s%d" % (T0 + 3), 0)]
        done = False
        while nv[0] < o["pv"]:
            vissue()
            if nv[0] >= o["mla"] and not done:
                if o["xt"] and not o["lq"]:
                    a("s_and_b32 s0, s0, 0xffffff80")
                    a("s_sub_u32 s0, s0, 1024")
                    a("buffer_load_dword v28, v%d, s[%d:%d], s0 offen sc1" % (VR4, R_WS, R_WS + 3))
                    vm.issue("ps")
                if not o["exp"] & 2:
                    self.ld_ws(*mll[0])
                    vm.issue("ml")
                done = True
        if not o["exp"] & 2:
            self.gpoll(mll, [ML + 2], 16, 17, sleep=o["psleep"], first_issued=True, vm=vm, vtag="ml", alt=T0 + 3 if o["lq"] & 2 else None)
        self.cstamp(3)
        if o["xt"] and not o["lq"]:
            a("v_cmp_eq_u32 vcc, s1, v28")
            a("s_cmp_eq_u64 vcc, -1")
            a("s_cselect_b32 s0, 0x%x, 0" % FAST)
        a("v_mov_b32 v16, v%d" % ML)
        mlx = (4,) if o["mlc"] else (8, 4, 16, 32)
        for x in mlx:
            self.xred("v_max_f32", 16, 17, x)
        a("v_sub_f32 v17, v%d, v16" % ML)
        a("v_sub_f32 v18, v%d, v16" % VMX)
        a("v_mul_f32 v17, %s, v17" % LOG2E)
        a("v_mul_f32 v18, %s, v18" % LOG2E)
        a("v_exp_f32 v17, v17")
        a("v_exp_f32 v18, v18")
        a("v_mul_f32 v17, v17, v%d" % (ML + 1))
        if o["mlc"]:
            a("v_add_f32_dpp v17, v17, v17 row_ror:4 %s" % DM)
        else:
            for x in mlx:
                self.xred("v_add_f32", 17, 19, x)
        a("v_rcp_f32 v19, v17")
        a("v_fma_f32 v15, -v17, v19, 1.0")
        a("v_fma_f32 v19, v15, v19, v19")
        a("v_mul_f32 v18, v18, v19")
        P, PT, ACC = KV + 64, KV + 80, KV + 96
        for u in range(4):
            a("v_mul_f32 v%d, v%d, v18" % (S + u, S + u))
        for u in range(4):
            a("v_mov_b32_dpp v%d, v%d quad_perm:[2,3,0,1] %s" % (PT + u, S + u, DM))
        for u in range(4):
            a("v_cvt_pk_bf16_f32 v%d, v%d, v%d" % (P + 4 * u, S + u, PT + u))
        for m in range(1, 4):
            for u in range(4):
                a("v_mov_b32_dpp v%d, v%d row_ror:%d %s" % (P + 4 * u + m, P + 4 * u, 16 - 4 * m, DM))
        if o["pace"]:
            vm.wait("pc")
            a("v_lshlrev_b32 v%d, 1, v%d" % (VG8, VR4))
        if o["oa"]:
            a("s_mov_b32 s%d, %d" % (T0 + 4, L_Q))
        else:
            a("s_lshl_b32 s%d, s3, 10" % (T0 + 4))
            a("s_add_u32 s%d, s%d, %d" % (T0 + 4, T0 + 4, L_OP))
        a("v_lshlrev_b32 v10, 5, v0")
        a("v_add_u32 v10, s%d, v10" % (T0 + 4))
        assert done
        for blk in range(4):
            for _ in range(32 if blk == 3 else (34 - o["pv"]) // 4):
                vissue()
            if blk == 2 and "blk1" in hooks:
                hooks["blk1"](vm)
            if blk == 3 and o["mo"] & 4:
                for m in range(4):
                    if m == 3:
                        if o["sp"] & 2:
                            a("s_setprio 2")
                    vm.wait("v%d" % (25 + 2 * m))
                    if m == 3:
                        self.stamp(9)
                        if "v31" in hooks:
                            hooks["v31"](vm)
                    for e in range(8):
                        a("v_perm_b32 v%d, v%d, v%d, s%d" % (VP + 4 * e + m, self.vreg(25 + 2 * m) + (e >> 1), self.vreg(24 + 2 * m) + (e >> 1), S_HI if e & 1 else S_LO))
                        if m == 3 and e >= 2:
                            self.mfma(ACC + 4 * (e - 2), P + 12, VP + 4 * (e - 2), ACC + 4 * (e - 2))
                for e in (6, 7):
                    self.mfma(ACC + 4 * e, P + 12, VP + 4 * e, ACC + 4 * e)
                continue
            vm.wait("v%d" % (8 * blk + 7))
            if blk == 3:
                self.stamp(9)
                if "v31" in hooks:
                    hooks["v31"](vm)
            for e in range(8):
                T = PT + 4 * (e & 3)
                for m in range(4):
                    i0 = 8 * blk + 2 * m
                    a("v_perm_b32 v%d, v%d, v%d, s%d" % (T + m, self.vreg(i0 + 1) + (e >> 1), self.vreg(i0) + (e >> 1), S_HI if e & 1 else S_LO))
                self.mfma(ACC + 4 * e, P + 4 * blk, T, None if blk == 0 else ACC + 4 * e)
        a("s_mov_b64 exec, 0xffff")
        for e in range(8):
            if o["oa"]:
                a("ds_add_f32 v10, v%d offset:%d" % (ACC + 4 * e, 4 * e))
                a("ds_add_f32 v10, v%d offset:%d" % (ACC + 4 * e + 1, 512 + 4 * e))
            else:
                a("ds_write2_b32 v10, v%d, v%d offset0:%d offset1:%d" % (ACC + 4 * e, ACC + 4 * e + 1, e, 128 + e))
        a("s_mov_b64 exec, -1")
        vm.wait("w")
        if o["sp"] & 2:
            a("s_setprio 0")
        a("s_waitcnt lgkmcnt(0)")
        a("s_barrier")
        skip = a.newlabel("opub")
        a("s_cmp_lg_u32 s3, 7")
        a("s_cbranch_scc1 %s" % skip)
        if o["sp"] & 1:
            a("s_setprio 3")
        a("v_add_u32 v10, %d, v%d" % (L_Q if o["oa"] else L_OP, VV))
        OR = VP + 36
        for x in range(1 if o["oa"] else 8):
            a("ds_read_b128 %s, v10 offset:%d" % (vr(OR + 4 * x, 4), 1024 * x))
        a("v_lshrrev_b32 v11, 5, v0")
        a("v_lshlrev_b32 v11, 13, v11")
        a("v_and_b32 v12, 31, v0")
        a("v_lshl_add_u32 v11, v12, 4, v11")
        a("s_lshl4_add_u32 s%d, s%d, s%d" % (T0, S_HKV, S_B))
        a("s_lshl1_add_u32 s%d, s%d, s%d" % (T0, T0, S_HALF))
        a("s_lshl_b32 s%d, s%d, 9" % (T0, T0))
        a("s_add_u32 s%d, s%d, 0x%x" % (T0, T0, OG))
        self.pack_consts()
        a("v_mov_b32 v15, s%d" % S_TAG)
        if o["oa"]:
            a("s_waitcnt lgkmcnt(0)")
        for x in range(1, 1 if o["oa"] else 8):
            a("s_waitcnt lgkmcnt(%d)" % (7 - x))
            for h in range(2):
                a("v_pk_add_f32 %s, %s, %s" % (vr(OR + 2 * h, 2), vr(OR + 2 * h, 2), vr(OR + 4 * x + 2 * h, 2)))
        self.pack24(12, OR)
        self.store2(12, 11, T0)
        if o["sp"] & 1:
            a("s_setprio 0")
        a.label(skip)
        self.stamp(10)
        if o["exp"] & 8:
            a("s_waitcnt vmcnt(0)")
            a("s_branch .Lexit")

    def op_addr(self, vd, base, pitch, t):
        a = self.a
        if self.o["pairs"]:
            a("v_bfe_u32 v%d, v0, 1, 3" % vd)
        else:
            a("v_and_b32 v%d, 7, v0" % vd)
        a("v_mul_u32_u24 v%d, %d, v%d" % (vd, pitch, vd))
        a("v_and_b32 v%d, 48, v0" % t)
        if self.o["sm"] & 2:
            a("v_lshl_add_u32 v%d, v%d, 1, v%d" % (vd, t, vd))
            a("v_and_b32 v%d, 1, v0" % t)
            a("v_lshlrev_b32 v%d, 4, v%d" % (t, t))
        a("v_add3_u32 v%d, v%d, v%d, s%d" % (vd, vd, t, base))

    def part_addr(self, vd, ustride, t):
        a = self.a
        if self.o["sm"] & 2:
            a("v_lshrrev_b32 v%d, 4, v0" % vd)
            a("v_and_b32 v%d, 1, v0" % t)
            a("v_lshl_add_u32 v%d, v%d, 1, v%d" % (vd, vd, t))
            a("v_mul_u32_u24 v%d, %d, v%d" % (vd, ustride, vd))
            a("v_bfe_u32 v%d, v0, 1, 3" % t)
            a("v_lshl_add_u32 v%d, v%d, 4, v%d" % (vd, t, vd))
            return
        if self.o["pairs"]:
            a("v_bfe_u32 v%d, v0, 1, 3" % vd)
            a("v_mul_u32_u24 v%d, %d, v%d" % (vd, ustride, vd))
            a("v_and_b32 v%d, 1, v0" % t)
            a("v_lshl_add_u32 v%d, v%d, 4, v%d" % (vd, t, vd))
            a("v_and_b32 v%d, 48, v0" % t)
            a("v_lshl_add_u32 v%d, v%d, 1, v%d" % (vd, t, vd))
            return
        a("v_and_b32 v%d, 7, v0" % vd)
        a("v_mul_u32_u24 v%d, %d, v%d" % (vd, ustride, vd))
        a("v_bfe_u32 v%d, v0, 3, 1" % t)
        a("v_lshl_add_u32 v%d, v%d, 6, v%d" % (vd, t, vd))
        a("v_and_b32 v%d, 48, v0" % t)
        a("v_add_u32 v%d, v%d, v%d" % (vd, t, vd))

    def bits(self, vd, spec, base, t):
        a = self.a
        a("v_mov_b32 v%d, %s" % (vd, base))
        for sb, n, db in spec:
            a("v_bfe_u32 v%d, v0, %d, %d" % (t, sb, n))
            a("v_lshl_add_u32 v%d, v%d, %d, v%d" % (vd, t, db, vd))

    def smidx(self, vd, t):
        self.a("v_mov_b32 v%d, 0x4444" % vd)
        self.a("v_mov_b32 v%d, 0xeeee" % t)
        self.a("v_cndmask_b32 v%d, v%d, v%d, s[%d:%d]" % (vd, vd, t, S_ODD, S_ODD + 1))

    def smout(self, D):
        a = self.a
        a("v_add_f32 v%d, v%d, v%d" % (D, D, D + 1))
        a("v_add_f32 v%d, v%d, v%d" % (D + 2, D + 2, D + 3))
        a("v_add_f32 v%d, v%d, v%d" % (D + 4, D + 4, D + 5))
        a("v_add_f32 v%d, v%d, v%d" % (D + 6, D + 6, D + 7))
        a("s_not_b64 vcc, vcc")
        a("v_cndmask_b32_dpp v%d, v%d, v%d, vcc %s" % (D + 1, D, D + 2, QP1032))
        a("v_cndmask_b32_dpp v%d, v%d, v%d, vcc %s" % (D + 3, D + 4, D + 6, QP1032))
        a("s_not_b64 vcc, vcc")
        a("v_cndmask_b32_dpp v%d, v%d, v%d, vcc %s" % (D, D + 2, D, QP1032))
        a("v_cndmask_b32_dpp v%d, v%d, v%d, vcc %s" % (D + 2, D + 6, D + 4, QP1032))

    def sel8(self, d0, d1):
        for i in range(4):
            self.a("v_cndmask_b32 v%d, v%d, v%d, vcc" % (d0 + i, d0 + i, d1 + i))

    def vcc8(self):
        m = "0x55555555" if self.o["sm"] & 2 else "0xaaaaaaaa" if self.o["pairs"] else "0xff00ff00"
        self.a("s_mov_b32 vcc_lo, %s" % m)
        self.a("s_mov_b32 vcc_hi, %s" % m)

    def red_scatter(self, r, b3=True):
        a = self.a
        a("v_permlane32_swap_b32 v%d, v%d" % (r, r + 2))
        a("v_permlane32_swap_b32 v%d, v%d" % (r + 1, r + 3))
        a("v_pk_add_f32 %s, %s, %s" % (vr(r, 2), vr(r, 2), vr(r + 2, 2)))
        a("v_permlane16_swap_b32 v%d, v%d" % (r, r + 1))
        a("v_add_f32 v%d, v%d, v%d" % (r, r, r + 1))
        if b3:
            self.xred("v_add_f32", r, None, 8)

    def sum_quads(self, r, n):
        a = self.a
        idx = list(range(n))
        while len(idx) > 1:
            nxt = []
            for i in range(0, len(idx) - 1, 2):
                for h in range(2):
                    a("v_pk_add_f32 %s, %s, %s" % (vr(r + 4 * idx[i] + 2 * h, 2), vr(r + 4 * idx[i] + 2 * h, 2), vr(r + 4 * idx[i + 1] + 2 * h, 2)))
                nxt.append(idx[i])
            if len(idx) & 1:
                nxt.append(idx[-1])
            idx = nxt

    def sel_hilo(self, d, p):
        a = self.a
        a("v_lshlrev_b32 v%d, 16, v%d" % (d, p))
        a("v_and_b32 v%d, 0xffff0000, v%d" % (p, p))
        a("s_mov_b32 vcc_lo, 0xffff0000")
        a("s_mov_b32 vcc_hi, 0xffff0000")
        a("v_cndmask_b32 v%d, v%d, v%d, vcc" % (d, d, p))

    def dma1152_addr(self, vd, t, t2):
        a = self.a
        a("v_bfe_u32 v%d, v0, 4, 1" % t)
        a("s_and_b32 s%d, s3, 1" % T0)
        a("s_lshl_b32 s%d, s%d, 2" % (T0, T0))
        a("v_lshl_or_b32 v%d, v%d, 1, s%d" % (t, t, T0))
        a("v_and_b32 v%d, 7, v0" % t2)
        a("v_xor_b32 v%d, v%d, v%d" % (t, t, t2))
        a("v_lshrrev_b32 v%d, 3, v0" % t2)
        a("v_mul_u32_u24 v%d, 1152, v%d" % (t2, t2))
        a("v_lshl_add_u32 v%d, v%d, 4, v%d" % (vd, t, t2))

    def tr128_addr(self, v0_, v1_, sh, base, t, t2):
        a = self.a
        a("v_lshrrev_b32 v%d, 4, v0" % t)
        a("v_bfe_u32 v%d, v0, 2, 2" % t2)
        a("v_lshl_add_u32 v%d, v%d, 3, v%d" % (v0_, t, t2))
        a("v_lshlrev_b32 v%d, 7, v%d" % (v0_, v0_))
        a("v_and_b32 v%d, 1, v%d" % (t, t))
        a("v_lshrrev_b32 v%d, 1, v%d" % (t2, t2))
        a("v_lshl_add_u32 v%d, v%d, 1, v%d" % (t, t, t2))
        a("s_and_b32 s%d, s3, 1" % T0)
        a("s_lshl_b32 s%d, s%d, 1" % (T0, T0))
        a("v_xor_b32 v%d, s%d, v%d" % (t, T0, t))
        a("v_and_b32 v%d, 3, v0" % t2)
        a("v_lshl_add_u32 v%d, v%d, 3, v%d" % (v0_, t2, v0_))
        a("s_lshr_b32 s%d, s3, 1" % T0)
        a("s_lshl_b32 s%d, s%d, %d" % (T0, T0, sh))
        if base:
            a("s_add_u32 s%d, s%d, %d" % (T0, T0, base))
        a("v_add_u32 v%d, s%d, v%d" % (v0_, T0, v0_))
        a("v_xor_b32 v%d, 1, v%d" % (t2, t))
        a("v_lshl_add_u32 v%d, v%d, 5, v%d" % (v1_, t2, v0_))
        a("v_lshl_add_u32 v%d, v%d, 5, v%d" % (v0_, t, v0_))

    def nclass(self):
        a = self.a
        o = self.o
        kst = o["kst_n"]
        self.pub = "n"
        a("s_sub_u32 s%d, s%d, 18" % (S_R, S_R))
        a("s_cmp_ge_u32 s%d, 8" % S_R)
        a("s_cbranch_scc1 .La_early")
        a("s_cmp_eq_u32 s%d, 3" % S_R)
        self.setpat("q3", "q")
        self.early_addr()
        kp = o["kpre"]
        if o["wf"] & 2:
            o["kpre"] = 0
        vm = self.vm0()
        kq = self.q_part(vm)
        o["kpre"] = kp
        wlate = o["wo_pos"] + 11 * o["wo_step"] >= kst or o["wol"]
        if wlate:
            a("s_mov_b64 s[%d:%d], 0" % (P_WG, P_WG + 1))
            a("v_mov_b32 v%d, 0" % VDMA)
        self.kloads(vm, kq, kst, o["w_n"] if o["spat"] == 2 else o["w_e"], "n" if o["spat"] or o["tpace"] else None, fl=o["aps_q"])
        a("s_branch .Ln_att")
        a.label(".La_early")
        self.setpat("a")
        VWO = VDMA
        a("s_cmp_ge_u32 s%d, 11" % S_R)
        a("s_cselect_b32 s%d, 1, 0" % S_E0)
        a("s_mul_i32 s%d, s%d, 3" % (T0 + 1, S_E0))
        a("s_sub_u32 s%d, s%d, s%d" % (S_E1, S_R, T0 + 1))
        a("s_sub_u32 s%d, s%d, 8" % (S_E1, S_E1))
        a("s_lshl1_add_u32 s%d, s%d, s%d" % (S_E0, S_X, S_E0))
        a.srd(R_A, P_WO, 4096 * 576 * 2)
        self.dma1152_addr(VWO, 12, 13)
        a("s_mul_i32 s%d, s%d, %d" % (S_E2, S_E0, 256 * 1152))
        a("s_mul_i32 s%d, s%d, 384" % (T0, S_E1))
        a("s_add_u32 s%d, s%d, s%d" % (S_E2, S_E2, T0))
        a("s_mul_i32 s%d, s3, %d" % (T0, 8 * 1152))
        a("s_add_u32 s%d, s%d, s%d" % (S_E2, S_E2, T0))
        a("s_lshl_b32 s%d, s3, 10" % (T0 + 1))
        vm = self.vm0()
        wl = [(cb, i) for i in range(4) for cb in range(3)]
        wend = wl[12 - o["wol"]:]
        wl = wl[:12 - o["wol"]]
        self.pstart()
        for n in range(kst):
            if n >= o["kpre"]:
                if o["aps_a"] and n > o["p0"]:
                    self.flow(n, "n", vm, o["w_n"], kn=o["aps_a"])
                else:
                    vm.window(o["w_n"])
                    if n == o["p0"]:
                        self.tagwait(vm)
                    self.pace(n, "n", vm)
                self.kload(vm, n)
                self.psample(n, "n", vm, "n")
            if n >= o["wo_pos"] and (n - o["wo_pos"]) % o["wo_step"] == 0 and wl:
                cb, i = wl.pop(0)
                if o["aps_a"] and n > o["p0"]:
                    self.flow(n + 1, "n", vm, o["w_n"], False, kn=o["aps_a"])
                else:
                    vm.window(o["w_n"])
                a("s_add_u32 m0, s%d, %d" % (T0 + 1, L_WO + cb * 32768 + i * 8192))
                a("s_add_u32 s%d, s%d, %d" % (T0, S_E2, cb * 128 + i * 64 * 1152))
                a("buffer_load_dwordx4 v%d, s[%d:%d], s%d offen nt lds" % (VWO, R_A, R_A + 3, T0))
                vm.issue("w")
        spr = {}
        if wlate:
            a("s_mov_b64 s[%d:%d], -1" % (P_WG, P_WG + 1))

            def wo(cb, i):
                def f():
                    a("s_lshl_b32 s%d, s3, 10" % T0)
                    a("s_add_u32 m0, s%d, %d" % (T0, L_WO + cb * 32768 + i * 8192))
                    a("s_add_u32 s%d, s%d, %d" % (T0, S_E2, cb * 128 + i * 64 * 1152))
                    a("s_mov_b64 exec, s[%d:%d]" % (P_WG, P_WG + 1))
                    a("buffer_load_dwordx4 v%d, s[%d:%d], s%d offen nt lds" % (VWO, R_A, R_A + 3, T0))
                    a("s_mov_b64 exec, -1")
                return f
            for n in range(kst, 63):
                if (n - o["wo_pos"]) % o["wo_step"] == 0 and wl:
                    spr[n] = [wo(*wl.pop(0))]
        assert not wl
        vm.wait("pc")
        a.label(".Ln_att")
        hooks = {}
        if wend:
            def hk(vm):
                lab = a.newlabel("wol")
                assert not vm.has("w")
                a("s_cmp_lt_u32 s%d, 8" % S_R)
                a("s_cbranch_scc1 %s" % lab)
                for it in wend:
                    wo(*it)()
                a.label(lab)
            hooks["blk1" if o["wolp"] else "v31"] = hk
        self.attention("n", spr, kst, hooks)
        a("s_cmp_lt_u32 s%d, 8" % S_R)
        a("s_cbranch_scc1 %s" % (".Lq_pf" if o["pf"] or o["hp"] else ".Lexit"))
        def wwait():
            a("s_cmp_eq_u32 s3, 7")
            a.lines.append("    s_cbranch_scc0 2")
            a.lines.append("    s_waitcnt vmcnt(%d)" % (1 if o["nosl"] & 1 else 2))
            a.lines.append("    s_branch 1")
            a.lines.append("    s_waitcnt vmcnt(0)")
            a("s_barrier")
        s_late = 2 * min(i for _, i in wend) if wend else 8
        Wt, AO, D = 32, 96, 128
        if o["sm"] & 2:
            self.bits(6, [(4, 1, 7), (2, 2, 5), (5, 1, 4), (0, 2, 2)], "0", 7)
        else:
            a("v_and_b32 v6, 31, v0")
            a("v_lshlrev_b32 v6, 3, v6")
            a("v_lshrrev_b32 v7, 5, v0")
            a("v_lshl_add_u32 v6, v7, 2, v6")
        a("s_mul_i32 s%d, s3, %d" % (T0, OPITCH))
        a("s_add_u32 s%d, s%d, %d" % (T0, T0, L_OI))
        a("v_add_u32 v6, s%d, v6" % T0)
        a("s_lshl4_add_u32 s%d, s%d, s3" % (S_E2, S_E0))
        a("s_lshl_b32 s%d, s%d, 10" % (S_E2, S_E2))
        a("s_add_u32 s%d, s%d, 0x%x" % (S_E2, S_E2, OG))
        a("v_add_u32 v5, 8192, v%d" % VV)
        a("s_cmp_ge_u32 s3, 6")
        a("s_cbranch_scc1 %s" % (".La_w67" if wend else ".La_poll"))
        self.tr128_addr(7, 8, 15, L_WO, 16, 17)

        def wread(s0, s1):
            for s in range(s0, s1):
                for tt in range(2):
                    for u in range(2):
                        a("ds_read_b64_tr_b16 %s, v%d offset:%d" % (vr(Wt + 32 * tt + 4 * s + 2 * u, 2), 7 + tt, (32 * s + 4 * u) * 128))
        wread(0, s_late)
        a("s_mov_b32 s%d, %d" % (T0, L_OI))
        self.op_addr(9, T0, OPITCH, 16)
        self.part_addr(10, 9 * 4096, 16)
        a("s_mul_i32 s%d, s%d, 3" % (T0 + 3, S_E1))
        a("s_lshr_b32 s%d, s3, 1" % T0)
        a("s_add_u32 s%d, s%d, s%d" % (T0 + 3, T0 + 3, T0))
        if o["cl"] & 2:
            a("s_and_b32 s%d, s%d, 1" % (T0, S_E0))
            a("s_lshl1_add_u32 s%d, s%d, s%d" % (T0 + 3, T0 + 3, T0))
            a("s_and_b32 s%d, s3, 1" % T0)
            a("s_lshl1_add_u32 s%d, s%d, s%d" % (T0 + 3, T0 + 3, T0))
            a("s_lshr_b32 s%d, s%d, 1" % (T0, S_E0))
            a("s_lshl3_add_u32 s%d, s%d, s%d" % (T0 + 3, T0 + 3, T0))
        else:
            a("s_lshl4_add_u32 s%d, s%d, s%d" % (T0 + 3, T0 + 3, S_E0))
            a("s_and_b32 s%d, s3, 1" % T0)
            a("s_lshl1_add_u32 s%d, s%d, s%d" % (T0 + 3, T0 + 3, T0))
        a("s_lshl_b32 s%d, s%d, 7" % (T0 + 3, T0 + 3))
        a("s_add_u32 s%d, s%d, 0x%x" % (T0 + 3, T0 + 3, AG))
        if o["tg"]:
            a("s_mul_i32 s%d, s%d, 3" % (P_K, S_X))
            a("s_add_u32 s%d, s%d, s%d" % (P_K, P_K, S_E1))
            a("s_mul_i32 s%d, s%d, 3" % (P_K, P_K))
            a("s_lshr_b32 s%d, s3, 1" % T0)
            a("s_add_u32 s%d, s%d, s%d" % (P_K, P_K, T0))
            a("s_and_b32 s%d, s%d, 1" % (T0, S_E0))
            a("s_lshl1_add_u32 s%d, s%d, s%d" % (P_K, P_K, T0))
            a("s_and_b32 s%d, s3, 1" % T0)
            a("s_lshl1_add_u32 s%d, s%d, s%d" % (P_K, P_K, T0))
            a("s_lshl4_add_u32 s%d, s%d, 0x%x" % (P_K, P_K, TFG + FAST))
        a("v_mov_b32 v%d, s%d" % (D + 11, S_TAG))
        if o["sm"] & 2:
            self.smidx(D + 12, D + 13)
            for i in range(8):
                a("v_mov_b32 v%d, 0" % (D + i))
        if wend:
            a("s_waitcnt vmcnt(0)")
            a("s_barrier")
            wread(s_late, 8)
            a("s_branch .La_poll")
            a.label(".La_w67")
            wwait()
        a.label(".La_poll")
        dry = o["dry"] & 1
        if dry:
            a("s_mov_b32 s%d, 1" % S_DRY)
            a("s_branch .La_go")
            a.label(".La_again")
            a("s_mov_b32 s%d, 0" % S_DRY)
            a.label(".La_go")
        self.unpack_consts()
        if o["mp"] & 4:
            self.mpoll([(16, 4, VV, "s%d" % (T0 + 2), 0), (20, 4, 5, "s%d" % (T0 + 2), 0)], [[19], [23]], [(T0 + 2, S_E2)])
        else:
            self.gpoll2([(16, 4, VV, "s%d" % (T0 + 2), 0), (20, 4, 5, "s%d" % (T0 + 2), 0)], [(T0 + 2, S_E2)], [19, 23], 24, 25, sleep=o["asleep"], dry=dry)
        self.stamp(1, 2)
        for h in range(2):
            r = 16 + 4 * h
            self.unpack24(r)
        for h in range(2):
            r = 16 + 4 * h
            a("v_permlane32_swap_b32 v%d, v%d" % (r, r + 2))
            a("v_permlane32_swap_b32 v%d, v%d" % (r + 1, r + 3))
        for h in range(2):
            r = 16 + 4 * h
            a("v_pk_add_f32 %s, %s, %s" % (vr(r, 2), vr(r, 2), vr(r + 2, 2)))
        for h in range(2):
            r = 16 + 4 * h
            a("v_cvt_pk_bf16_f32 v%d, v%d, v%d" % (r, r, r + 1))
        a("ds_write2_b32 v6, v16, v20 offset1:64")
        def mark():
            a("s_mov_b64 exec, 1")
            a("buffer_store_dword v%d, v%d, s[%d:%d], s%d offen" % (D + 11, VV, R_WS, R_WS + 3, P_K))
            a("s_mov_b64 exec, -1")
        self.pack_consts()
        self.vcc8()
        a("s_waitcnt lgkmcnt(0)")
        a("s_barrier")
        a("s_cmp_ge_u32 s3, 6")
        a("s_cbranch_scc1 %s" % (".La_67" if dry else ".Lexit"))
        if o["sm"] & 2:
            assert not dry
            for s in range(4):
                a("ds_read_b128 %s, v9 offset:%d" % (vr(AO + 4 * s, 4), 128 * s))
            if o["tg"] == 2:
                mark()
            for s in range(4):
                a("s_waitcnt lgkmcnt(%d)" % (3 - s))
                for tt in range(2):
                    a("v_smfmac_f32_16x16x64_bf16 %s, %s, %s, v%d" % (vr(D + 4 * tt, 4), vr(AO + 4 * s, 4), vr(Wt + 32 * tt + 8 * s, 8), D + 12))
            self.smout(D)
        else:
            for s in range(8):
                a("ds_read_b128 %s, v9 offset:%d" % (vr(AO + 4 * s, 4), 64 * s))
            if dry:
                a("s_cmp_lg_u32 s%d, 0" % S_DRY)
            for s in range(8):
                a("s_waitcnt lgkmcnt(%d)" % (7 - s))
                for tt in range(2):
                    self.mfma(D + 4 * tt, Wt + 32 * tt + 4 * s, AO + 4 * s, None if s == 0 else D + 4 * tt)
            self.sel8(D, D + 4)
        self.pack24(D + 8, D)
        if dry:
            a("s_cbranch_scc1 .La_again")
        a("buffer_store_dwordx4 %s, v10, s[%d:%d], s%d offen %ssc1" % (vr(D + 8, 4), R_WS, R_WS + 3, T0 + 3, "sc0 " if o["s01"] & 1 else ""))
        if o["tg"] == 1 and o["ag2"] != 2:
            mark()
        if o["ag2"]:
            a("s_add_u32 s%d, s%d, 0x%x" % (T0 + 3, T0 + 3, FAST))
            a("buffer_store_dwordx4 %s, v10, s[%d:%d], s%d offen sc1" % (vr(D + 8, 4), R_WS, R_WS + 3, T0 + 3))
        if o["tg"] == 1 and o["ag2"] == 2:
            mark()
        for c in range(1, o["pk1"] if o["cp1"] else 1):
            a("s_add_u32 s%d, s%d, 0x%x" % (T0 + 3, T0 + 3, FAST))
            a("buffer_store_dwordx4 %s, v10, s[%d:%d], s%d offen sc1" % (vr(D + 8, 4), R_WS, R_WS + 3, T0 + 3))
        self.stamp(2, 2)
        a("s_branch .Lexit")
        if o["pf"]:
            self.q_prefetch()
        if o["hp"]:
            self.q_help()
        if dry:
            a.label(".La_67")
            self.dry_skip(".La_again")
            a("s_branch .Lexit")

    def q_help(self):
        a, o = self.a, self.o
        assert o["bal"]
        a.label(".Lq_pf")
        if o["hp"][0] == "c":
            a("s_sub_u32 s%d, s2, 144" % T0)
            a("s_lshl3_add_u32 s%d, s%d, s3" % (T0, T0))
            a("s_lshl_b32 s%d, s%d, 10" % (T0 + 2, T0))
            a("s_add_u32 s%d, s%d, 0x%x" % (T0 + 2, T0 + 2, CG))
            a("s_add_u32 s%d, s%d, 0x80000" % (T0 + 3, T0 + 2))
            a("s_add_u32 s%d, s%d, 0x100000" % (T0 + 4, T0 + 2))
            a("s_barrier")
            if o["hp"][1:] and int(o["hp"][1:]):
                a("s_sleep %d" % int(o["hp"][1:]))
            self.ld_ws(16, 4, VV, "s%d" % (T0 + 2), 0)
            self.ld_ws(20, 4, VV, "s%d" % (T0 + 3), 0)
            a("s_cmp_lt_u32 s%d, %d" % (T0, 1296 - 1024))
            a("s_cselect_b64 exec, -1, 0")
            self.ld_ws(24, 4, VV, "s%d" % (T0 + 4), 0)
            a("s_mov_b64 exec, -1")
            a("s_waitcnt vmcnt(0)")
            self.stamp(2, 2)
            a("s_branch .Lexit")
            return
        if o["hp"][0] == "e":
            k = int(o["hp"][1:])
            a("s_lshl3_add_u32 s%d, s%d, s%d" % (T0 + 2, S_X, S_R))
            a("s_lshl3_add_u32 s%d, s%d, s3" % (T0 + 2, T0 + 2))
            a("s_lshl_b32 s%d, s%d, 3" % (T0 + 2, T0 + 2))
            a("s_lshl_b32 s%d, s%d, 2" % (T0, S_X))
            a("s_lshr_b32 s%d, 0x37654210, s%d" % (T0 + 3, T0))
            a("s_and_b32 s%d, s%d, 7" % (T0 + 3, T0 + 3))
            a("s_add_u32 s%d, s%d, 64" % (T0 + 3, T0 + 3))
            a("s_lshl3_add_u32 s%d, s%d, s%d" % (T0 + 3, T0 + 3, S_R))
            a("s_lshl3_add_u32 s%d, s%d, s3" % (T0 + 3, T0 + 3))
            a("v_lshrrev_b32 v6, 2, v0")
            a("v_add_u32 v6, s%d, v6" % (T0 + 2))
            a("v_mov_b32 v7, s%d" % (T0 + 3))
            a("v_cmp_gt_u32 vcc, 32, v0")
            a("v_cndmask_b32 v6, v7, v6, vcc")
            a("v_mul_u32_u24 v6, 1152, v6")
            a("v_and_b32 v7, 3, v0")
            a("v_lshl_add_u32 v6, v7, 7, v6")
            a.srd(R_A, P_WD, 576 * 4608 * 2)
            m = sum(((1 << k) - 1) << (4 * i) for i in range(9))
            a("s_mov_b32 exec_lo, 0x%x" % (m & 0xffffffff))
            a("s_mov_b32 exec_hi, 0x%x" % (m >> 32))
            a("buffer_load_dword v16, v6, s[%d:%d], 0 offen offset:%d nt" % (R_A, R_A + 3, 128 * (9 - k)))
            a("s_mov_b64 exec, -1")
            a("s_waitcnt vmcnt(0)")
            a("s_branch .Lexit")
            return
        a("s_lshl3_add_u32 s%d, s%d, s%d" % (T0 + 2, S_X, S_R))
        a("s_lshl_b32 s%d, s%d, 2" % (T0, S_X))
        a("s_lshr_b32 s%d, 0x37654210, s%d" % (T0 + 3, T0))
        a("s_and_b32 s%d, s%d, 7" % (T0 + 3, T0 + 3))
        a("s_add_u32 s%d, s%d, 64" % (T0 + 3, T0 + 3))
        a("s_mul_i32 s%d, s3, 72" % (T0 + 4))
        a("s_lshl3_add_u32 s%d, s%d, s3" % (T0 + 5, S_R))
        a("s_mul_i32 s%d, s%d, 9" % (T0 + 5, T0 + 5))
        a("s_sub_u32 s%d, s%d, 8" % (T0 + 5, T0 + 5))
        a("v_add_u32 v6, s%d, v0" % (T0 + 4))
        a("v_add_u32 v7, 64, v6")
        a("v_add_u32 v8, s%d, v0" % (T0 + 5))
        a("v_cmp_gt_u32 vcc, 8, v0")
        a("v_cndmask_b32 v7, v8, v7, vcc")
        a("v_mov_b32 v8, s%d" % (T0 + 3))
        a("v_mov_b32 v9, s%d" % (T0 + 2))
        a("v_cndmask_b32 v8, v8, v9, vcc")
        a("v_mul_u32_u24 v10, 9216, v6")
        a("v_lshl_add_u32 v10, v9, 7, v10")
        a("v_mul_u32_u24 v11, 9216, v7")
        a("v_lshl_add_u32 v11, v8, 7, v11")
        a("v_mul_u32_u24 v12, 576, v9")
        a("v_add_lshl_u32 v12, v12, v6, 7")
        a("v_mul_u32_u24 v13, 576, v8")
        a("v_add_lshl_u32 v13, v13, v7, 7")
        a("s_barrier")
        n = 0
        fl = o["hpf"].replace("_", "")
        for m in o["hp"]:
            ptr, v = {"g": (P_WG, 10), "u": (P_WU, 10), "d": (P_WD, 12)}[m]
            a.srd(R_A, ptr, 576 * 4608 * 2)
            a("buffer_load_dword v%d, v%d, s[%d:%d], 0 offen %s" % (16 + n, v, R_A, R_A + 3, fl))
            a("s_mov_b64 exec, 0x1ffff")
            a("buffer_load_dword v%d, v%d, s[%d:%d], 0 offen %s" % (17 + n, v + 1, R_A, R_A + 3, fl))
            a("s_mov_b64 exec, -1")
            n += 2
        self.stamp(1, 2)
        a("s_waitcnt vmcnt(0)")
        self.stamp(2, 2)
        a("s_branch .Lexit")

    def q_prefetch(self):
        a, o = self.a, self.o
        g = o["pf_g"]
        a.label(".Lq_pf")
        if o["pf_bar"]:
            a("s_barrier")
        a("s_lshl3_add_u32 s%d, s%d, s3" % (T0 + 2, S_R))
        n = 0
        if o["pf_up"] < 9:
            a.srd(R_B, P_WU, 576 * 4608 * 2)
            per = 1152 // g
            a("s_mul_i32 s%d, s%d, 9216" % (T0 + 3, T0 + 2))
            a("s_mul_i32 s%d, s%d, 1152" % (T0 + 4, S_X))
            a("s_add_u32 s%d, s%d, s%d" % (T0 + 3, T0 + 3, T0 + 4))
            a("s_add_u32 s%d, s%d, %d" % (T0 + 3, T0 + 3, 64 * 9216 * o["pf_up"]))
            rows = 64 // per
            a("v_mul_u32_u24 v6, %d, v0" % ((65536 + per - 1) // per))
            a("v_lshrrev_b32 v6, 16, v6")
            a("v_mul_u32_u24 v7, %d, v6" % per)
            a("v_sub_u32 v7, v0, v7")
            a("v_mul_u32_u24 v7, %d, v7" % g)
            a("v_mul_u32_u24 v6, %d, v6" % (64 * 9216))
            a("v_add_u32 v6, v6, v7")
            left = 9 - o["pf_up"]
            while left > 0:
                k = min(rows, left)
                a("s_mov_b64 exec, 0x%x" % ((1 << (k * per)) - 1) if k * per <= 32 else "s_bfm_b64 exec, %d, 0" % (k * per))
                a("buffer_load_dword v%d, v6, s[%d:%d], s%d offen" % (16 + n, R_B, R_B + 3, T0 + 3))
                n += 1
                left -= k
                if left > 0:
                    a("s_add_u32 s%d, s%d, %d" % (T0 + 3, T0 + 3, 64 * 9216 * k))
            a("s_mov_b64 exec, -1")
        a.srd(R_A, P_WD, 4608 * 576 * 2)
        a("s_mul_i32 s%d, s%d, 10368" % (T0 + 3, T0 + 2))
        a("s_mul_i32 s%d, s%d, %d" % (T0 + 4, S_X, 9 * IMG))
        a("s_add_u32 s%d, s%d, s%d" % (T0 + 3, T0 + 3, T0 + 4))
        a("v_mul_u32_u24 v6, %d, v0" % g)
        tot = 10368 // g
        while tot > 0:
            k = min(64, tot)
            if k < 64:
                a("s_bfm_b64 exec, %d, 0" % k)
            a("buffer_load_dword v%d, v6, s[%d:%d], s%d offen" % (16 + n, R_A, R_A + 3, T0 + 3))
            n += 1
            tot -= k
            if tot > 0:
                a("s_add_u32 s%d, s%d, %d" % (T0 + 3, T0 + 3, 64 * g))
        a("s_mov_b64 exec, -1")
        self.stamp(1, 2)
        a("s_waitcnt vmcnt(0)")
        self.stamp(2, 2)
        a("s_branch .Lexit")

    def h2_row(self, XR, SB, CB, X, ST, H):
        a = self.a
        Pk = [XR + 2 * i for i in range(5)]
        fill = []
        for i in range(5):
            fill.append(lambda i=i: a("v_and_b32 v%d, 0xffff0000, v%d" % (X[i] + 1, Pk[i])))
            fill.append(lambda i=i: a("v_lshlrev_b32 v%d, 16, v%d" % (X[i], Pk[i])))
        self.row_stats(Pk, ST, after=fill)
        self.ln_apply(X, ST)
        self.modulate(X, CB, SB, [H + i for i in range(5)])

    def h2_row_dot(self, XR, SB, CB, ST, H, T):
        a = self.a
        Pk = [XR + 2 * i for i in range(5)]
        self.row_stats(Pk, ST)
        a("s_movk_i32 s%d, 0x3f80" % T0)
        a("s_mov_b32 s%d, 0x3f800000" % (T0 + 1))
        for i in range(5):
            for e in range(2):
                a("v_dot2_f32_bf16 v%d, v%d, s%d, v%d" % (T + 2 * i + e, Pk[i], T0 + e, ST))
        for i in range(5):
            self.rnd2(T + 2 * i)
        for i in range(5):
            for e in range(2):
                a("v_mul_f32 v%d, v%d, v%d" % (T + 2 * i + e, T + 2 * i + e, ST + 2))
        for i in range(5):
            a("v_cvt_pk_bf16_f32 v%d, v%d, v%d" % (Pk[i], T + 2 * i, T + 2 * i + 1))
        for i in range(5):
            for e in range(2):
                a("v_dot2_f32_bf16 v%d, v%d, v%d, 0" % (T + 2 * i + e, Pk[i], CB[i] + e))
        for i in range(5):
            a("v_cvt_pk_bf16_f32 v%d, v%d, v%d" % (Pk[i], T + 2 * i, T + 2 * i + 1))
        for i in range(5):
            for e in range(2):
                a("v_dot2_f32_bf16 v%d, v%d, s%d, v%d" % (T + 2 * i + e, Pk[i], T0 + e, SB[i] + e))
        for i in range(5):
            a("v_cvt_pk_bf16_f32 v%d, v%d, v%d" % (H + i, T + 2 * i, T + 2 * i + 1))

    def sbcb_addr(self):
        a = self.a
        a("s_and_b32 s%d, s%d, %d" % (T0 + 2, S_X, self.o["rl"] - 1))
        a("s_mul_i32 s%d, s%d, %d" % (T0 + 2, T0 + 2, REP))
        a("s_mul_i32 s%d, s3, 2304" % (T0 + 3))
        a("s_add_u32 s%d, s%d, s%d" % (T0 + 2, T0 + 2, T0 + 3))
        a("s_add_u32 s%d, s%d, 0x%x" % (T0 + 6, T0 + 2, MG + 3 * 4 * REP))
        a("s_add_u32 s%d, s%d, 0x%x" % (T0 + 7, T0 + 2, MG + 4 * 4 * REP))
        a("s_mul_i32 s%d, s%d, %d" % (S_E2, S_X, REP))
        a("s_add_u32 s%d, s%d, s%d" % (S_E2, S_E2, T0 + 3))
        a("s_add_u32 s%d, s%d, 0x%x" % (S_E2, S_E2, XG))

    def mclass(self):
        a = self.a
        o = self.o
        a.label(".Lm")
        self.pub = "m"
        if o["b3p"]:
            a("s_sub_u32 s%d, 3, s%d" % (T0, S_X))
            a("s_and_b32 s%d, s%d, 7" % (T0, T0))
            a("s_mul_i32 s%d, s%d, 9" % (P_WQ + 1, S_X))
            a("s_add_u32 s%d, s%d, s%d" % (P_WQ + 1, P_WQ + 1, T0))
            a("s_cmp_eq_u32 s2, 67")
            a("s_cselect_b32 s%d, 35, s%d" % (P_WQ + 1, P_WQ + 1))
            a("s_cselect_b32 s%d, s3, 64" % P_WQ)
            a("s_lshl_b32 s%d, s%d, 7" % (P_WQ + 1, P_WQ + 1))
            if o["b3c"]:
                a("s_sub_u32 s%d, s%d, %d" % (P_WQ + 1, P_WQ + 1, o["b3c"]))
            a("s_cmp_eq_u32 s%d, 7" % S_R)
            a("s_cselect_b32 s%d, s3, s%d" % (P_WQ, P_WQ))
        if o["dg"]:
            a("s_mov_b32 s%d, 0" % P_WQ)
        a("s_cmp_lt_u32 s2, 54")
        self.setpat("m", "m0")
        kst = self.early_m()
        WR, RS, RC, G = [48, 49, 50, 51, 34 if o["rin"] else 52], 56, 66, 76

        def lanecol():
            if o["sm"] & 2:
                self.bits(16, [(3, 1, 5), (5, 1, 4), (0, 3, 1), (4, 1, 0)], "0", 17)
            elif o["pairs"]:
                a("v_and_b32 v16, 8, v0")
                a("v_and_b32 v17, 1, v0")
                a("v_lshl_add_u32 v16, v17, 2, v16")
                a("v_bfe_u32 v17, v0, 1, 2")
                a("v_add_u32 v16, v16, v17")
            else:
                a("v_and_b32 v16, 15, v0")

        def xload():
            if not o["sm"] & 2:
                a("v_lshrrev_b32 v17, 4, v0")
                a("v_lshl_add_u32 v16, v16, 2, v17")
            a("v_lshlrev_b32 v7, 1, v16")
            a("v_and_b32 v8, 62, v16")
            a("v_lshlrev_b32 v8, 2, v8")
            a("s_mul_i32 s%d, s3, 1152" % S_E1)
            a("s_lshl_b32 s%d, s%d, 7" % (T0, S_R))
            a("s_add_u32 s%d, s%d, s%d" % (S_E1, S_E1, T0))
            a.srd(R_B, P_X, 8 * 576 * 2)
            a("buffer_load_ushort v40, v7, s[%d:%d], s%d offen %s" % (R_B, R_B + 3, S_E1, o["inl"]))

        def wrload():
            a.srd(R_A, P_WR, 576 * 2)
            a("buffer_load_dwordx2 %s, v%d, s[%d:%d], 0 offen %s" % (vr(WR[0], 2), VR8, R_A, R_A + 3, o["inl"]))
            a("buffer_load_dwordx2 %s, v%d, s[%d:%d], 0 offen offset:512 %s" % (vr(WR[2], 2), VR8, R_A, R_A + 3, o["inl"]))
            a("buffer_load_dword v%d, v%d, s[%d:%d], 0 offen %s" % (WR[4], VR4, R_A, R_A + 3, o["inl"]))

        def r2test():
            a("s_lshr_b32 s%d, s%d, 1" % (T0, S_X))
            a("s_and_b32 s%d, s3, 3" % (T0 + 1))
            a("s_cmp_lg_u32 s%d, s%d" % (T0, T0 + 1))
        SB = [RS + 2 * i for i in range(5)]
        CB = [RC + 2 * i for i in range(5)]

        def r2prep(ga):
            if not o["rin"]:
                wrload()
            a("s_add_u32 s%d, s%d, %d" % (T0 + 3, T0 + 2, 4 * REP))
            a("s_add_u32 s%d, s%d, %d" % (T0 + 4, T0 + 2, 8 * REP))
            a("s_add_u32 s%d, s%d, %d" % (T0 + 5, T0 + 2, 12 * REP))
            lds = self.row_loads(RS, "s%d" % (T0 + 6)) + self.row_loads(RC, "s%d" % (T0 + 7)) + [(G + 2 * i, 2, 8, "s%d" % (T0 + 3 + i), 0) for i in range(3)]
            self.gpoll(lds + ga, [RS + 1 + 2 * i for i in range(13)] + [43] * len(ga), 24, 25, sleep=2)
            for i in range(5):
                self.unpk(SB[i], SB[i] + 1, SB[i])
                self.unpk(CB[i], CB[i] + 1, CB[i])
            for i in range(3):
                self.sel_hilo(G + 2 * i + 1, G + 2 * i)
        spr = {}
        if o["rin"]:
            assert o["rin"] > o["qc_m"] + 5
            def f():
                lanecol()
                xload()
                if o["gain"]:
                    assert o["rl"] == 1
                    a("s_lshl1_add_u32 s%d, s%d, 0x%x" % (T0, S_E1, MG + 2 * 4 * REP))
                    self.ld_ws(42, 2, 8, "s%d" % T0, 0)
                if o["rm"]:
                    r2test()
                    a("s_cselect_b64 exec, 0, -1")
                wrload()
                if o["otouch"]:
                    a.srd(R_A, P_OUT, 8 * 576 * 2)
                    a("buffer_load_ushort v39, v7, s[%d:%d], s%d offen nt" % (R_A, R_A + 3, S_E1))
                if o["rm"]:
                    a("s_mov_b64 exec, -1")
            f.free = (5 if o["otouch"] else 4) + (1 if o["gain"] else 0)
            spr[o["rin"]] = [f]
            if o["agt"]:
                def g():
                    a("s_mul_i32 s%d, s3, 9" % T0)
                    a("s_add_u32 s%d, s%d, s%d" % (T0, T0, S_R))
                    a("s_lshl_b32 s%d, s%d, 12" % (T0, T0))
                    a("s_add_u32 s%d, s%d, 0x%x" % (T0, T0, AG))
                    a("s_lshl_b32 s%d, s%d, 9" % (T0 + 1, S_X))
                    a("s_add_u32 s%d, s%d, s%d" % (T0, T0, T0 + 1))
                    a("s_mov_b64 exec, 0xffffffff")
                    a("buffer_load_dwordx4 v[88:91], v%d, s[%d:%d], s%d offen %s" % (VV, R_WS, R_WS + 3, T0, o["agf"].replace("_", "")))
                    a("s_mov_b64 exec, -1")
                g.free = 1
                spr.setdefault(o["agt"], []).append(g)
        self.attention("m", spr, kst)
        if o["dg"]:
            lab = a.newlabel("dg")
            a("s_cmp_eq_u32 s%d, 0" % P_WQ)
            a("s_cbranch_scc1 %s" % lab)
            a("v_and_b32 v16, 15, v0")
            a("s_mul_i32 s%d, s3, 144" % T0)
            a("s_add_u32 s%d, s%d, %d" % (T0, T0, L_PUB))
            a("v_lshl_add_u32 v16, v16, 3, s%d" % T0)
            a("ds_read_b32 v20, v16")
            a("ds_read_b32 v22, v16 offset:4")
            a("v_mov_b32 v21, s%d" % S_TAG)
            a("v_mov_b32 v23, s%d" % S_TAG)
            a("s_waitcnt lgkmcnt(0)")
            a("s_mov_b64 exec, 0xffff")
            a("buffer_store_dwordx4 v[20:23], v%d, s[%d:%d], s%d offen sc1" % (VV, R_WS, R_WS + 3, P_WQ))
            a("s_mov_b64 exec, -1")
            a.label(lab)
        dry = o["dry"] & 2
        assert not (dry and (o["rin"] or o["rprep"]))
        if dry:
            a("s_mov_b32 s%d, 1" % S_DRY)
            a("s_branch .Lr_go")
            a.label(".Lr_again")
            a("s_mov_b32 s%d, 0" % S_DRY)
            a.label(".Lr_go")
        self.sbcb_addr()
        if not o["sm"] & 2:
            lanecol()
            a("v_lshlrev_b32 v9, 4, v16")
        if not o["rin"]:
            xload()
        a("s_lshl_b32 s%d, s%d, 8" % (T0, S_R))
        a("s_add_u32 s%d, s%d, s%d" % (T0 + 2, T0 + 2, T0))
        a("s_add_u32 s%d, s%d, 0x%x" % (T0 + 2, T0 + 2, MG + 2 * 4 * REP))
        a("s_add_u32 s%d, s%d, s%d" % (S_E0, S_E2, T0))
        if o["pw"] & 2:
            a("s_add_u32 s%d, s%d, 0x%x" % (T0, S_E0, FAST))
            a("v_not_b32 v45, s%d" % S_TAG)
            a("s_mov_b32 exec_lo, 0xffff")
            a("s_mov_b32 exec_hi, 0xffff")
            a("buffer_store_dwordx2 v[44:45], v8, s[%d:%d], s%d offen" % (R_WS, R_WS + 3, T0))
            a("s_mov_b64 exec, -1")
        ga = [(42, 2, 8, "s%d" % (T0 + 2), 0)]
        if o["rprep"]:
            r2test()
            a("s_cbranch_scc1 .Lr_ga")
            r2prep(ga)
            a("s_branch .Lr_ga2")
            a.label(".Lr_ga")
        self.gpoll(ga, [43], 24, 25, sleep=2, first_issued=bool(o["gain"]), vm=VM(a), vtag="none")
        if o["rprep"]:
            a.label(".Lr_ga2")
        a("v_lshlrev_b32 v40, 16, v40")
        self.sel_hilo(41, 42)
        a("s_mul_i32 s%d, s3, 9" % (T0 + 3))
        a("s_add_u32 s%d, s%d, s%d" % (T0 + 3, T0 + 3, S_R))
        a("s_lshl_b32 s%d, s%d, 12" % (T0 + 3, T0 + 3))
        a("s_add_u32 s%d, s%d, 0x%x" % (T0 + 3, T0 + 3, AG))
        if o["ag2"] == 2:
            a("s_bitcmp1_b32 s%d, 0" % S_X)
            a("s_cselect_b32 s%d, 0x%x, 0" % (T0, FAST))
            a("s_add_u32 s%d, s%d, s%d" % (T0 + 3, T0 + 3, T0))
        self.unpack_consts()
        a("v_mov_b32 v45, s%d" % S_TAG)
        a("v_mov_b32 v47, s%d" % S_TAG)
        if o["pk1"]:
            self.ppoll([(4 * i, 4, VV, "s%d" % (T0 + 3), 1024 * i) for i in range(4)], [[4 * i + 3] for i in range(4)],
                       lambda i, sb: self.merge24(16 + 4 * i, sb + 4 * i), o["pk1"], 16, 160, o["pgap"], copies=o["cp1"])
            self.stamp(3, 2)
        else:
            if o["tg"]:
                lab = a.newlabel("tg")
                a("s_cmp_eq_u32 s0, 0")
                a("s_cbranch_scc1 %s" % lab)
                a("s_mul_i32 s%d, s%d, 9" % (P_K, S_X))
                a("s_add_u32 s%d, s%d, s%d" % (P_K, P_K, S_R))
                a("s_lshl_b32 s%d, s%d, 6" % (P_K, P_K))
                a("s_add_u32 s%d, s%d, 0x%x" % (P_K, P_K, TFG + FAST))
                a("v_and_b32 v10, 0x30, v%d" % VV)
                self.gpoll([(11, 1, 10, "s%d" % P_K, 0)], [11], 32, 33, sleep=o["tgs"])
                a.label(lab)
            if o["r0"]:
                a("s_sleep %d" % o["r0"])
            va, st_ = VV, 1024
            if o["cl"] & 2:
                va, st_ = 10, 256
                a("v_and_b32 v10, 0x18, v0")
                a("v_lshlrev_b32 v10, 7, v10")
                a("v_and_b32 v11, 0x27, v0")
                a("v_and_b32 v12, 0x20, v0")
                a("v_lshl_add_u32 v10, v11, 4, v10")
                a("v_mul_u32_u24 v12, 12, v12")
                a("v_sub_u32 v10, v10, v12")
            if o["ip"] & 1:
                self.ipoll([(16 + 4 * i, 4, va, "s%d" % (T0 + 3), st_ * i) for i in range(4)], 32, 33, T0 + 3 if o["ag2"] == 1 else None)
            elif o["mp"] & 1:
                self.mpoll([(16 + 4 * i, 4, va, "s%d" % (T0 + 3), st_ * i) for i in range(4)], [[19 + 4 * i] for i in range(4)])
            else:
                self.gpoll([(16 + 4 * i, 4, va, "s%d" % (T0 + 3), st_ * i) for i in range(4)], [19, 23, 27, 31], 32, 33, sleep=o["rsleep"], dry=dry)
            self.stamp(3, 2)
            for i in range(0 if o["ip"] & 1 else 4):
                self.unpack24(16 + 4 * i)
        if not o["ip"] & 1:
            self.sum_quads(16, 4)
        self.red_scatter(16, b3=False)
        self.rnd(16, 16)
        a("v_mul_f32 v16, v16, v41")
        self.rnd(16, 16)
        a("v_add_f32 v17, v16, v40")
        a("v_add_f32 v16, v16, v40")
        a("v_mov_b32 v40, v16")
        a("v_permlane16_swap_b32 v16, v17")
        a("v_cvt_pk_bf16_f32 v44, v16, v17")
        if o["sm"] & 2:
            assert o["rin"]
            a("s_mov_b32 exec_lo, 0xffff")
            a("s_mov_b32 exec_hi, 0xffff")
            self.store2(44, 8, S_E0, 2, 2)
        else:
            a("v_cvt_pk_bf16_f32 v46, v16, v17")
            if dry:
                a("s_cmp_lg_u32 s%d, 0" % S_DRY)
            a("v_permlane32_swap_b32 v44, v46")
            if dry:
                a("s_cbranch_scc1 .Lr_nost")
            a("s_mov_b64 exec, 0xffff")
            self.store2(44, 9, S_E0, 2)
        a("s_mov_b64 exec, -1")
        self.stamp(4, 2)
        if dry:
            a.label(".Lr_nost")
        r2test()
        a("s_cbranch_scc1 %s" % (".Lr_fin" if dry else ".Lr_touch" if o["tch"] == 3 else ".Lexit"))
        self.rnd(40, 40)
        if not o["rprep"]:
            r2prep([])
        self.stamp(1, 2)
        XR, X0, ST, H = 84, 94, 104, 110

        def touch():
            a("s_and_b32 s%d, s%d, 1" % (T0, S_X))
            a("s_lshl1_add_u32 s%d, s%d, s%d" % (T0 + 1, S_R, T0))
            a("s_lshl3_add_u32 s%d, s%d, s3" % (T0 + 1, T0 + 1))
            a("s_mul_i32 s%d, s%d, 9216" % (T0 + 1, T0 + 1))
            a("s_add_u32 s%d, s%d, 0x%x" % (T0 + 1, T0 + 1, CG))
            a("s_add_u32 s%d, s%d, 8192" % (T0, T0 + 1))
            a("v_lshlrev_b32 v30, 7, v0")
            a("buffer_load_dword v28, v30, s[%d:%d], s%d offen sc1" % (R_WS, R_WS + 3, T0 + 1))
            a("s_mov_b64 exec, 0xff")
            a("buffer_load_dword v29, v30, s[%d:%d], s%d offen sc1" % (R_WS, R_WS + 3, T0))
            a("s_mov_b64 exec, -1")
        if o["tch"] == 2:
            touch()
        self.gpoll2(self.row_loads(XR, "s%d" % (T0 + 2)), [(T0 + 2, S_E2)], [XR + 1 + 2 * i for i in range(5)], 24, 25, sleep=1, dry=dry)
        if o["tch"] == 1:
            touch()
        self.h2_row(XR, SB, CB, [X0 + 2 * i for i in range(5)], ST, H)
        a("v_dot2_f32_bf16 v14, v%d, v%d, 0" % (H, WR[0]))
        for i in range(1, 5):
            if i == 4:
                a("s_mov_b64 exec, 0xffffffff")
            a("v_dot2_f32_bf16 v14, v%d, v%d, v14" % (H + i, WR[i]))
        a("s_mov_b64 exec, -1")
        for w in (32, 16, 8, 4, 2, 1):
            self.xred("v_add_f32", 14, 15, w)
        self.rnd(14, 14)
        self.silu(14, 15, 16, sig=True)
        self.rnd(14, 14)
        a("v_add_f32 v41, v40, v%d" % ST)
        self.rnd(41, 41)
        a("v_mul_f32 v41, v41, v%d" % (ST + 2))
        self.rnd(41, 41)
        a("v_mul_f32 v41, v41, v%d" % (G + 3))
        self.rnd(41, 41)
        a("v_add_f32 v41, v41, v%d" % (G + 1))
        self.rnd(41, 41)
        a("s_and_b32 s%d, s%d, 1" % (T0 + 6, S_X))
        a("s_lshl1_add_u32 s%d, s%d, s%d" % (T0 + 2, S_R, T0 + 6))
        a("s_lshl3_add_u32 s%d, s%d, s3" % (T0 + 2, T0 + 2))
        a("s_mul_i32 s%d, s%d, 9216" % (T0 + 2, T0 + 2))
        a("s_add_u32 s%d, s%d, 0x%x" % (T0 + 2, T0 + 2, CG))
        a("s_add_u32 s%d, s%d, 4096" % (T0 + 3, T0 + 2))
        a("s_add_u32 s%d, s%d, 8192" % (T0 + 7, T0 + 2))
        a("s_cmp_eq_u32 s%d, 0" % (T0 + 6))
        a("s_mov_b32 s%d, 0x00ff00ff" % T0)
        a("s_cselect_b32 s%d, s%d, 0xff00ff00" % (T0 + 6, T0))
        self.unpack_consts()
        a.srd(R_A, P_OUT, 8 * 576 * 2)
        CR = 120
        self.stamp(2, 2)
        so = [T0 + 2] * 4 + [T0 + 3] * 4 + [T0 + 7]
        if o["pk2r"]:
            CR = 84
            self.ppoll([(4 * i, 4, VV, "s%d" % so[i], 1024 * (i & 3)) for i in range(9)], [[4 * i + 3] for i in range(9)],
                       lambda i, sb: self.merge24(CR + 4 * i, sb + 4 * i), o["pk2r"], 36, 120, o["pgap"], copies=o["cp2"])
            self.stamp(5, 2)
        else:
            if o["tc"]:
                lab = a.newlabel("tc")
                a("s_cmp_eq_u32 s0, 0")
                a("s_cbranch_scc1 %s" % lab)
                if o["tc"] == 1:
                    for i in range(9):
                        self.ld_ws(CR + 4 * i, 4, VV, "s%d" % so[i], 1024 * (i & 3))
                a("s_lshl_b32 s%d, s%d, 8" % (P_K, S_X))
                a("s_add_u32 s%d, s%d, 0x%x" % (P_K, P_K, TCG + FAST))
                a("v_min_u32 v10, 8, v0")
                a("v_lshlrev_b32 v10, 4, v10")
                self.gpoll([(11, 1, 10, "s%d" % P_K, 0)], [11], 24, 25, sleep=o["tgs"])
                if o["r21"]:
                    a("s_sleep %d" % o["r21"])
                a.label(lab)
            if o["r20"]:
                a("s_sleep %d" % o["r20"])
            if o["ip"] & 2:
                self.ipoll([(CR + 4 * i, 4, VV, "s%d" % so[i], 1024 * (i & 3)) for i in range(9)], 24, 25)
            elif o["mp"] & 2:
                self.mpoll([(CR + 4 * i, 4, VV, "s%d" % so[i], 1024 * (i & 3)) for i in range(9)], [[CR + 3 + 4 * i] for i in range(9)])
            else:
                self.gpoll([(CR + 4 * i, 4, VV, "s%d" % so[i], 1024 * (i & 3)) for i in range(9)], [CR + 3 + 4 * i for i in range(9)], 24, 25, sleep=o["r2sleep"], dry=dry)
            self.stamp(5, 2)
            for i in range(0 if o["ip"] & 2 else 9):
                self.unpack24(CR + 4 * i)
        if not o["ip"] & 2:
            self.sum_quads(CR, 9)
        self.red_scatter(CR)
        self.rnd(CR, CR)
        a("v_mul_f32 v%d, v%d, v14" % (CR, CR))
        self.rnd(CR, CR)
        a("v_add_f32 v%d, v%d, v41" % (CR, CR))
        self.rnd(CR, CR)
        a("v_mul_f32 v%d, v%d, v%d" % (CR, CR, G + 5))
        self.rnd(CR, CR)
        a("v_add_f32 v%d, v%d, v40" % (CR, CR))
        if dry:
            a("s_cmp_lg_u32 s%d, 0" % S_DRY)
        a("v_cvt_pk_bf16_f32 v%d, v%d, v%d" % (CR, CR, CR))
        if dry:
            a("s_cbranch_scc1 .Lr_again")
        a("s_mov_b32 exec_lo, s%d" % (T0 + 6))
        a("s_mov_b32 exec_hi, s%d" % (T0 + 6))
        a("buffer_store_short v%d, v7, s[%d:%d], s%d offen%s" % (CR, R_A, R_A + 3, S_E1, ["", " sc1", " sc0 sc1", " nt"][o["osc"]]))
        a("s_mov_b64 exec, -1")
        a("s_or_b32 s%d, s2, s3" % T0)
        a("s_cmp_lg_u32 s%d, 0" % T0)
        a("s_cbranch_scc1 .Lexit")
        a("v_mov_b32 v13, s%d" % S_TAG)
        a("v_mov_b32 v12, 0")
        a("s_mov_b64 exec, 1")
        a("buffer_store_dword v13, v12, s[%d:%d], 0 offen%s" % (R_WS, R_WS + 3, ["", " sc1", " sc0 sc1", " nt"][o["osc"]]))
        a("s_mov_b64 exec, -1")
        a("s_branch .Lexit")
        if o["tch"] == 3:
            a.label(".Lr_touch")
            a("s_xor_b32 s%d, s%d, s%d" % (T0 + 1, T0 + 1, T0))
            a("s_and_b32 s%d, s3, 4" % (T0 + 2))
            a("s_add_u32 s%d, s%d, s%d" % (T0, T0, T0 + 2))
            a("s_and_b32 s%d, s%d, 1" % (T0 + 2, S_X))
            a("s_lshl1_add_u32 s%d, s%d, s%d" % (T0 + 2, S_R, T0 + 2))
            a("s_lshl3_add_u32 s%d, s%d, s%d" % (T0 + 2, T0 + 2, T0))
            a("s_mul_i32 s%d, s%d, 9216" % (T0 + 2, T0 + 2))
            a("s_mul_i32 s%d, s%d, 3072" % (T0 + 1, T0 + 1))
            a("s_add_u32 s%d, s%d, s%d" % (T0 + 2, T0 + 2, T0 + 1))
            a("s_add_u32 s%d, s%d, 0x%x" % (T0 + 2, T0 + 2, CG - 3072))
            for i in range(3):
                self.ld_ws(120 + 4 * i, 4, VV, "s%d" % (T0 + 2), 1024 * i)
            a("s_waitcnt vmcnt(0)")
            a("s_branch .Lexit")
        if dry:
            a.label(".Lr_fin")
            self.dry_skip(".Lr_again")
            a("s_branch .Lexit")

    def bcclass(self):
        a = self.a
        o = self.o
        a.label(".Lbc")
        self.pub = "bc"
        vm = self.vm0()
        kst = max(2, o["kpre"])
        self.kloads(vm, 0, kst)
        VGU = VDMA
        if o["bal"]:
            a("s_sub_u32 s%d, s%d, 9" % (T0, S_R))
            a("s_mov_b32 s%d, 0x63054210" % (T0 + 1))
            a("s_cmp_eq_u32 s%d, 14" % S_R)
            a("s_cselect_b32 s%d, s%d, s%d" % (T0, S_X, T0))
            a("s_cselect_b32 s%d, 0x37654210, s%d" % (T0 + 1, T0 + 1))
            a("s_cselect_b32 s%d, 8, s%d" % (S_E0, S_X))
            a("s_lshl_b32 s%d, s%d, 2" % (T0, T0))
            a("s_lshr_b32 s%d, s%d, s%d" % (T0, T0 + 1, T0))
            a("s_and_b32 s%d, s%d, 7" % (T0, T0))
            a("s_cmp_eq_u32 s%d, 17" % S_R)
            a("s_cselect_b32 s%d, 7, s%d" % (T0, T0))
            a("s_lshl3_add_u32 s%d, s%d, s%d" % (S_E0, S_E0, T0))
        else:
            a("s_mul_i32 s%d, s%d, 9" % (S_E0, S_X))
            a("s_add_u32 s%d, s%d, s%d" % (S_E0, S_E0, S_R))
            a("s_sub_u32 s%d, s%d, 9" % (S_E0, S_E0))
        a("s_and_b32 s%d, s%d, 7" % (T0, S_E0))
        a("s_cmp_eq_u32 s%d, 3" % T0)
        if o["lg"]:
            a("s_cselect_b64 s[%d:%d], -1, 0" % (P_WQ, P_WQ + 1))
        self.setpat("bc3", "bc")
        if o["dt"] & 1:
            a.srd(R_A, P_WD, 4608 * 576 * 2)
            a("s_mul_i32 s%d, s%d, %d" % (T0, S_E0, IMG))
            a("v_mul_u32_u24 v253, %d, v0" % (IMG - 128))
            a("s_cmp_eq_u32 s3, 1")
            a("s_cselect_b64 exec, 3, 0")
            a("buffer_load_dword v253, v253, s[%d:%d], s%d offen nt" % (R_A, R_A + 3, T0))
            a("s_mov_b64 exec, -1")
        a.srd(R_A, P_WG, 576 * 4608 * 2)
        a.srd(R_B, P_WU, 576 * 4608 * 2)
        self.dma64_addr(VGU, 9216, 12)
        a("s_mul_i32 s%d, s3, %d" % (S_E1, 8 * 9216))
        a("s_lshl_b32 s%d, s%d, 7" % (T0, S_E0))
        a("s_add_u32 s%d, s%d, s%d" % (S_E1, S_E1, T0))
        a("s_lshl_b32 s%d, s3, 10" % S_E2)
        self.tagwait()

        def gu(mat, i):
            def f():
                srd = R_B if mat else R_A
                a("s_add_u32 m0, s%d, %d" % (S_E2, IMG * mat + 8192 * i))
                a("s_add_u32 s%d, s%d, %d" % (T0, S_E1, 64 * 9216 * i))
                msk = o["lg"] and i >= (o["nup"] if mat else o["ngn"])
                if msk:
                    a("s_mov_b64 exec, s[%d:%d]" % (P_WQ, P_WQ + 1))
                a("buffer_load_dwordx4 v%d, s[%d:%d], s%d offen nt lds" % (VGU, srd, srd + 3, T0))
                if msk:
                    a("s_mov_b64 exec, -1")
            return f
        nup = o["nup"]
        ng = o["ng"]
        items = [gu(0, i) for i in range(ng)] + [gu(1, i) for i in range(nup + o["nu3"])]
        if o["lg"]:
            assert ng == 9 and o["upl"] == 2 and (o["lg"] == 1 or nup + o["lg3"] <= 9)
            ng = o["ngn"]
        spr = {}
        for k, f in enumerate(items):
            p = max(kst, o["g_pos"] + (k * o["g_step"]) // (10 if o["g_step"] >= 10 else 1))
            assert p < 64
            spr.setdefault(p, []).append(f)
        if o["upl"] == 1:
            spr[64] = [gu(1, i) for i in range(nup, 9)]
        if o["tlbw"]:
            def tw():
                a.srd(R_A, P_WD, 4608 * 576 * 2)
                a("s_mul_i32 s%d, s%d, %d" % (T0, S_E0, IMG))
                a("v_mul_u32_u24 v29, %d, v0" % (IMG - 128))
                a("v_mul_u32_u24 v30, %d, v0" % (64 * 9216))
                a("s_mov_b64 exec, 3")
                a("buffer_load_dword v29, v29, s[%d:%d], s%d offen" % (R_A, R_A + 3, T0))
                a("s_mov_b64 exec, 0x%x" % (0x1ff & ~((1 << nup) - 1)))
                a("buffer_load_dword v30, v30, s[%d:%d], s%d offen" % (R_B, R_B + 3, S_E1))
                a("s_mov_b64 exec, -1")
            assert o["tlbw"] > o["qc_bc"] + 5
            spr.setdefault(o["tlbw"], []).append(tw)
        WG_, WU, B, WD, DG, DU = 160, 68, 32, 104, 152, 156
        XR, SB0, CB0, X0, ST, H = 196, 206, 216, 226, 236, 242
        sm = o["sm"] & 1
        WST = 4
        if sm:
            WG_, WU, WST = 160, 164, 8
            XR, SB0, CB0, ST, X0, H = 68, 78, 88, 98, 68, 8
        VB_, V8, V4, VTA, VTB, VAW, VAR, VCS, VDN = 16, 17, 18, 19, 20, 21, 22, 23, 24
        eg = o["eg"]
        late = [("up", i) for i in range(9 if o["upl"] == 1 else nup, 9)]
        late = [("dn", i) for i in range(9)] + late if o["dnfirst"] else late + [("dn", i) for i in range(9)]
        late = [("g", i) for i in range(ng, 9)] + late
        assert ng == 9 or (not eg and not o["dnfirst"] and o["upl"] != 1)
        lateq = ["up"] * (9 - nup) if o["upl"] == 1 else []
        MR = [KV + 8 * i for i in range(6)]

        def modloads(sb, cb):
            return [(MR[0], 4, VV, sb, 0), (MR[1], 4, VV, sb, 1024), (MR[2], 2, VG8, sb, 0), (MR[3], 4, VV, cb, 0), (MR[4], 4, VV, cb, 1024), (MR[5], 2, VG8, cb, 0)]
        if o["modin"]:
            assert o["modin"] > o["qc_bc"] + 5
            def mi(k):
                def f():
                    a("s_and_b32 s%d, s%d, %d" % (T0, S_X, o["rl"] - 1))
                    a("s_mul_i32 s%d, s%d, %d" % (T0, T0, REP))
                    a("s_mul_i32 s%d, s3, 2304" % (T0 + 1))
                    a("s_add_u32 s%d, s%d, s%d" % (T0, T0, T0 + 1))
                    a("s_add_u32 s%d, s%d, 0x%x" % (T0, T0, MG + (3 + k) * 4 * REP))
                    for l in modloads("s%d" % T0, "s%d" % T0)[3 * k:3 * k + 3]:
                        self.ld_ws(*l)
                if o["modfree"]:
                    f.free = 3
                return f
            spr.setdefault(o["modin"], []).append(mi(0))
            spr.setdefault(o["modin"] + 2, []).append(mi(1))

        def lissue(vm, n, sl, tag=None, win=0):
            for _ in range(n):
                if not late:
                    return
                kind, i = late.pop(0)
                if o["exp"] & 32 or (o["exp"] & 64 and kind == "dn"):
                    vm.issue(tag or kind)
                    a("s_mov_b64 exec, 0")
                    a("buffer_load_dwordx4 v%d, s[%d:%d], s%d offen nt lds" % (VGU, R_B, R_B + 3, S_E1))
                    a("s_mov_b64 exec, -1")
                    if tag:
                        lateq.append(kind)
                    continue
                if win:
                    vm.window(win)
                if kind in ("u3", "un"):
                    a("s_add_u32 m0, s%d, %d" % (sl, IMG + 8192 * i))
                    a("s_add_u32 s%d, s%d, %d" % (T0, S_E1, 64 * 9216 * i))
                    a("%s exec, s[%d:%d]" % ("s_mov_b64" if kind == "u3" else "s_not_b64", P_WQ, P_WQ + 1))
                    a("buffer_load_dwordx4 v%d, s[%d:%d], s%d offen nt lds" % (VGU, R_B, R_B + 3, T0))
                    a("s_mov_b64 exec, -1")
                    kind = "up"
                elif kind in ("up", "g"):
                    srd = R_B if kind == "up" else R_A
                    a("s_add_u32 m0, s%d, %d" % (sl, (IMG if kind == "up" else 0) + 8192 * i))
                    a("s_add_u32 s%d, s%d, %d" % (T0, S_E1, 64 * 9216 * i))
                    if o["lg"] and kind == "g":
                        a("s_not_b64 exec, s[%d:%d]" % (P_WQ, P_WQ + 1))
                    a("buffer_load_dwordx4 v%d, s[%d:%d], s%d offen nt lds" % (VGU, srd, srd + 3, T0))
                    if o["lg"] and kind == "g":
                        a("s_mov_b64 exec, -1")
                else:
                    a("s_add_u32 m0, s%d, %d" % (sl, L_DOWN + (8192 - 128) * i))
                    a("buffer_load_dwordx4 v%d, s[%d:%d], s%d offen offset:%d nt lds" % (VDN, R_A, R_A + 3, S_KV, 128 * i))
                vm.issue(tag or kind)
                if tag:
                    lateq.append(kind)

        def gate_read():
            self.tr64_addr(VTA, 25, 26)
            a("v_add_u32 v%d, 32768, v%d" % (VTB, VTA))
            self.tr64(WG_, VTA, VTB, WST)
            a("v_add_u32 v%d, %d, v%d" % (VTA, IMG, VTA))
            a("v_add_u32 v%d, %d, v%d" % (VTB, IMG, VTB))
            a.srd(R_A, P_WD, 4608 * 576 * 2)
            a("s_mul_i32 s%d, s%d, %d" % (S_KV, S_E0, IMG))
            a("s_mul_i32 s%d, s3, %d" % (T0, 8 * 1152))
            a("s_add_u32 s%d, s%d, s%d" % (S_KV, S_KV, T0))
            self.dma1152_addr(VDN, 25, 26)
        hooks = {}
        if eg:
            assert o["g_pos"] + (8 * o["g_step"]) // (10 if o["g_step"] >= 10 else 1) < o["qa_bc"]
            def h1(vm):
                gate_read()
                a("s_waitcnt lgkmcnt(0)")
                a("s_barrier")
                lissue(vm, o["n1"], S_E2, "wl")
            hooks["blk1"] = h1
            hooks["v31"] = lambda vm: lissue(vm, o["n2"], S_E2, "wl")
        elif o["lg"] == 2:
            n2, l3, u3 = o["n2"], o["lg3"], nup + o["nu3"]
            nrm = [("g", i) for i in range(ng, 9)] + [("un", i) for i in range(nup, u3 + l3)]
            assert len(nrm) >= n2
            late = nrm[:n2] + [("u3", u3 + i) for i in range(l3)] + nrm[n2:] + [("up", i) for i in range(u3 + l3, 9)] + [("dn", i) for i in range(9)]
            hooks["v31"] = lambda vm: lissue(vm, n2 + l3, S_E2, "wl")
        elif o["upl"] == 2:
            hooks["v31"] = lambda vm: lissue(vm, min(o["n2"], 18 - ng - nup) if ng < 9 else min(o["hn"], 9 - nup - o["hb"]), S_E2, "wl")
            if o["hb"]:
                hooks["blk1"] = lambda vm: lissue(vm, o["hb"], S_E2, "wl")
        self.attention("bc", spr, kst, hooks)
        a("s_mov_b32 s%d, s%d" % (T0 + 5, S_E2))
        vm = VM(a)
        vm.q = list(lateq)
        if o["upl"] == 3:
            lissue(vm, 9 - nup, T0 + 5)
        lds = modloads("s%d" % (T0 + 6), "s%d" % (T0 + 7))
        lw = o["lw"] if o["lg"] == 2 else 0
        left = lambda ks: sum(k in ks for k, _ in late)
        if lw:
            assert o["modin"] and o["dne"] == 1
            a("s_barrier")
            self.sbcb_addr()
            lissue(vm, min(left(("g",)) + lw - 1, left(("g", "un", "up"))), T0 + 5, win=lw)
            if ng < 9:
                vm.wait("g")
                a("s_barrier")
            gate_read()
            lissue(vm, min(o["lga"], left(("un", "up"))), T0 + 5, win=lw)
        elif ng < 9:
            assert nup < 9
            if o["lgb"]:
                a("s_barrier")
            lissue(vm, min(len(late) - 9, sum(k == "g" for k, _ in late) + o["lgu"]), T0 + 5)
            self.sbcb_addr()
            if not o["modin"]:
                for l in lds:
                    self.ld_ws(*l)
                    vm.issue("mod")
            vm.wait("g")
            a("s_barrier")
        if not eg and not lw:
            gate_read()
        if nup == 9:
            self.tr64(WU, VTA, VTB)
        if ng == 9 and not lw:
            self.sbcb_addr()
        a("s_waitcnt lgkmcnt(0)")
        a("s_barrier")
        self.stamp(1, 3)
        if not o["modin"] and ng == 9:
            for l in lds:
                self.ld_ws(*l)
                vm.issue("mod")
        if lw:
            lissue(vm, left(("up", "un")), T0 + 5, win=lw)
        else:
            lissue(vm, len(late) - o["dnx"], T0 + 5)
        self.stamp(2, 3)
        self.act_addr(VB_, V8, V4, 25)
        self.pub_addr(VAW, VAR, 25)
        if sm:
            assert nup < 9 and o["dne"] == 1 and not o["dry"] & 4
            a("s_mul_i32 s%d, s3, %d" % (T0, APITCH))
            a("s_add_u32 s%d, s%d, %d" % (T0, T0, L_ACT))
            def bits(vd, spec, base):
                a("v_mov_b32 v%d, %s" % (vd, base))
                for sb, n, db in spec:
                    a("v_bfe_u32 v25, v0, %d, %d" % (sb, n))
                    a("v_lshl_add_u32 v%d, v25, %d, v%d" % (vd, db, vd))
            bits(V8, [(4, 2, 7), (1, 1, 6), (3, 1, 5), (2, 1, 3), (0, 1, 2)], "s%d" % T0)
            a("s_add_u32 s%d, s%d, 1024" % (T0, T0))
            bits(V4, [(2, 1, 6), (4, 1, 5), (0, 1, 4), (3, 1, 3), (1, 1, 2)], "s%d" % T0)
            a("v_lshrrev_b32 v25, 3, v0")
            a("v_mul_u32_u24 v%d, 144, v25" % VAW)
            a("v_and_b32 v25, 7, v0")
            a("v_lshl_add_u32 v%d, v25, 1, v%d" % (VAW, VAW))
            a("s_lshl_b32 s%d, s3, 4" % T0)
            if o["sm"] & 2:
                a("v_lshrrev_b32 v25, 3, v0")
                a("v_mul_u32_u24 v26, 144, v25")
                self.bits(VAW, [(1, 1, 4), (2, 1, 2), (0, 1, 1)], "v26", 25)
                a("s_and_b32 s%d, s3, 1" % (T0 + 1))
                a("s_lshl_b32 s%d, s%d, 3" % (T0 + 1, T0 + 1))
                a("s_sub_u32 s%d, s%d, s%d" % (T0, T0, T0 + 1))
            a("s_add_u32 s%d, s%d, %d" % (T0, T0, L_PUB))
            a("v_add_u32 v%d, s%d, v%d" % (VAW, T0, VAW))
            a("v_mov_b32 v%d, 0x4444" % DU)
            a("v_mov_b32 v25, 0xeeee")
            a("v_cndmask_b32 v%d, v%d, v25, s[%d:%d]" % (DU, DU, S_ODD, S_ODD + 1))
            for i in range(4):
                a("v_mov_b32 v%d, 0" % (DG + i))
            for i in range(24 if o["sm"] & 2 else 0):
                a("v_mov_b32 v%d, 0" % (232 + i))
        a("s_mov_b32 s%d, %d" % (T0, L_PUB))
        self.op_addr(VAR, T0, 144, 25)
        self.part_addr(VCS, 9216, 25)
        VD0 = 28
        self.tr128_addr(VD0, VD0 + 1, 13, L_DOWN, 25, 26)
        a("v_add_u32 v%d, 0x10000, v%d" % (VD0 + 2, VD0))
        a("v_add_u32 v%d, 0x10000, v%d" % (VD0 + 3, VD0 + 1))
        a("s_mul_i32 s%d, s3, %d" % (T0 + 3, 8 * 9216))
        if o["cl"] & 1:
            a("s_lshl_b32 s%d, s2, 7" % T0)
            a("s_add_u32 s%d, s%d, s%d" % (T0 + 3, T0 + 3, T0))
            a("s_add_u32 s%d, s%d, 0x%x" % (T0 + 3, T0 + 3, CG - 72 * 128))
        else:
            a("s_lshl_b32 s%d, s%d, 7" % (T0, S_E0))
            a("s_add_u32 s%d, s%d, s%d" % (T0 + 3, T0 + 3, T0))
            a("s_add_u32 s%d, s%d, 0x%x" % (T0 + 3, T0 + 3, CG))
        a("s_add_u32 s%d, s%d, %d" % (S_E0, T0 + 3, 64 * 9216))
        a("s_add_u32 s%d, s%d, %d" % (S_E1, T0 + 3, 128 * 9216))
        if o["tc"]:
            a("s_lshl4_add_u32 s%d, s%d, s%d" % (P_K, S_X, S_R))
            a("s_lshl4_add_u32 s%d, s%d, 0x%x" % (P_K, P_K, TCG + FAST - 9 * 16))
        dry = o["dry"] & 4
        SB = [SB0 + 2 * i for i in range(5)]
        CB = [CB0 + 2 * i for i in range(5)]
        pay = [MR[0], MR[0] + 2, MR[1], MR[1] + 2, MR[2], MR[3], MR[3] + 2, MR[4], MR[4] + 2, MR[5]]
        if lw:
            lissue(vm, 1, T0 + 5, win=lw)
        self.gpoll(lds, [r + 1 for r in pay], 25, 26, sleep=2, first_issued=True, vm=vm, vtag="mod")
        self.stamp(6, 3)
        if lw:
            lissue(vm, 1, T0 + 5, win=lw)
        for i in range(5):
            self.unpk(SB[i], SB[i] + 1, pay[i])
            if o["ld"]:
                a("v_and_b32 v%d, 0xffff, v%d" % (CB[i], pay[5 + i]))
                a("v_and_b32 v%d, 0xffff0000, v%d" % (CB[i] + 1, pay[5 + i]))
            else:
                self.unpk(CB[i], CB[i] + 1, pay[5 + i])
        if dry:
            a("s_mov_b32 s%d, 1" % S_DRY)
            a("s_branch %s" % (".Lbc_go2" if o["dry"] & 8 else ".Lbc_go"))
            a.label(".Lbc_again")
            a("s_mov_b32 s%d, 0" % S_DRY)
        def dnl(p):
            return ["ds_read_b64_tr_b16 %s, v%d offset:%d" % (vr(WD + 16 * p + (8 * tt + 4 * ks if o["sm"] & 2 else 8 * ks + 4 * tt) + 2 * u, 2), VD0 + tt + (p & 2), 32768 * (p & 1) + (32 * ks + 4 * u) * 128)
                    for ks in range(2) for tt in range(2) for u in range(2)]

        def dnread(p):
            for l in dnl(p):
                a(l)

        def dn3():
            a("s_cmp_ge_u32 s3, 2")
            a("s_cbranch_scc1 .Lbc_nodn3")
            dnread(2)
            a.label(".Lbc_nodn3")
        if lw:
            assert not dry
            lissue(vm, 9 if o["lwd"] else lw - 3, T0 + 5, win=0 if o["lwd"] else lw)
        if nup < 9:
            vm.wait("up")
            self.stamp(3, 3)
            a("s_barrier")
            self.stamp(4, 3)
            self.tr64(WU, VTA, VTB, WST)
            if sm:
                a("s_waitcnt lgkmcnt(0)")
                for s_ in range(9):
                    for i in range(4):
                        a("v_mov_b32 v%d, v%d" % (8 + i, WG_ + 8 * s_ + i))
                    for i in range(4):
                        a("v_mov_b32_dpp v%d, v%d row_ror:8 row_mask:0xf bank_mask:0xc" % (WG_ + 8 * s_ + i, WU + 8 * s_ + i))
                    for i in range(4):
                        a("v_mov_b32_dpp v%d, v%d row_ror:8 row_mask:0xf bank_mask:0x3" % (WU + 8 * s_ + i, 8 + i))
        if lw:
            lissue(vm, len(late), T0 + 5, win=lw)
        if o["dne"] == 1:
            assert not o["dnx"]
            a("s_waitcnt vmcnt(0)")
            if o["xe"]:
                a("s_add_u32 s%d, s%d, s0" % (T0 + 2, S_E2))
                for l in self.row_loads(XR, "s%d" % (T0 + 2)):
                    self.ld_ws(*l)
            a("s_barrier")
            dnread(0)
            dnread(1)
            dn3()
        self.stamp(5, 2)
        self.stamp(5, 3)
        if o["stamps"] == 3:
            a("s_waitcnt vmcnt(0)")
            self.stamp(7, 3)
        if o["mp"] & 8:
            self.mpoll(self.row_loads(XR, "s%d" % (T0 + 2)), [[XR + 1, XR + 3], [XR + 5, XR + 7], [XR + 9]], [(T0 + 2, S_E2)])
        else:
            self.gpoll2(self.row_loads(XR, "s%d" % (T0 + 2)), [(T0 + 2, S_E2)], [XR + 1 + 2 * i for i in range(5)], 25, 26, sleep=o["xsleep"], issued=bool(o["xe"]))
        self.stamp(1, 2)
        if dry:
            a.label(".Lbc_go")
        if o["ld"]:
            self.h2_row_dot(XR, SB, CB, ST, H, B)
        else:
            self.h2_row(XR, SB, CB, [X0 + 2 * i for i in range(5)], ST, H)
        if sm:
            a("ds_write2_b32 v%d, v%d, v%d offset0:0 offset1:4" % (V8, H, H + 1))
            a("ds_write2_b32 v%d, v%d, v%d offset0:128 offset1:132" % (V8, H + 2, H + 3))
            a("ds_write_b32 v%d, v%d" % (V4, H + 4))
        else:
            self.row_write(V8, V4, H)
        a("s_waitcnt lgkmcnt(0)")
        a("s_barrier")
        self.stamp(2, 2)
        for s in range(9):
            a("ds_read_b128 %s, v%d offset:%d" % (vr(B + 4 * s, 4), VB_, 128 * s))
        DD = 232
        assert not o["sm"] & 2 or (sm and o["mo"] & 2)
        for s in range(9):
            a("s_waitcnt lgkmcnt(%d)" % (min(15, 8 + s) if o["dne"] == 2 else 8 - s))
            if sm:
                a("v_smfmac_f32_16x16x64_bf16 %s, %s, %s, v%d" % (vr(DG, 4), vr(B + 4 * s, 4), vr(WG_ + 8 * s, 8), DU))
                continue
            self.mfma(DG, WG_ + 4 * s, B + 4 * s, None if s == 0 else DG)
            self.mfma(DU, WU + 4 * s, B + 4 * s, None if s == 0 else DU)
            if o["dne"] == 2 and s < 8:
                for l in (dnl(0) + dnl(1))[2 * s:2 * s + 2]:
                    a(l)

        if dry:
            a.label(".Lbc_go2")
        if o["dne"] == 0:
            dnread(0)
            dnread(1)
        if o["dne"] != 1:
            dn3()
        if sm:
            a("v_add_f32 v12, v%d, v%d" % (DG, DG + 1))
            a("v_add_f32 v13, v%d, v%d" % (DG + 2, DG + 3))
            a("v_cvt_pk_bf16_f32 v13, v12, v13")
            a("v_lshlrev_b32 v12, 16, v13")
            a("v_and_b32 v14, 0xffff0000, v13")
            a("v_mov_b32 v13, v14")
            a("v_mov_b32_dpp v14, v12 row_ror:8 row_mask:0xf bank_mask:0x3")
            a("v_mov_b32_dpp v12, v13 row_ror:8 row_mask:0xf bank_mask:0xc")
        elif o["mo"] & 1:
            for D in (DG, DU):
                a("v_permlane32_swap_b32 v%d, v%d" % (D, D + 2))
                a("v_permlane32_swap_b32 v%d, v%d" % (D + 1, D + 3))
            for D in (DG, DU):
                a("v_cndmask_b32 v%d, v%d, v%d, s[%d:%d]" % (D + 1, D + 1, D + 2, S_ODD, S_ODD + 1))
                a("v_cndmask_b32 v%d, v%d, v%d, s[%d:%d]" % (D, D, D + 3, S_ODD, S_ODD + 1))
            a("v_add_f32_dpp v12, v%d, v%d %s" % (DG + 1, DG, QP1032))
            a("v_add_f32_dpp v13, v%d, v%d %s" % (DU + 1, DU, QP1032))
            a("v_cvt_pk_bf16_f32 v12, v12, v13")
            a("v_and_b32 v14, 0xffff0000, v12")
            a("v_lshlrev_b32 v12, 16, v12")
        else:
            self.fixup(DG, 12)
            self.fixup(DU, 14)
            self.rnd(12, 12)
            self.rnd(14, 14)
        self.silu(12, 25, 26, 27)
        self.rnd(12, 12)
        a("v_mul_f32 v12, v12, v14")
        a("v_cvt_pk_bf16_f32 v12, v12, v12")
        a("ds_write_b16 v%d, v12" % VAW)
        self.pack_consts()
        self.vcc8()
        for p in range(3):
            a("v_mov_b32 v%d, s%d" % (B + 24 + 4 * p + 3, S_TAG))
        if o["mo"] & 2:
            a("s_cmp_ge_u32 s3, 2")
        a("s_waitcnt lgkmcnt(0)")
        a("s_barrier")
        self.stamp(3, 2)
        a("ds_read_b128 v[8:11], v%d" % VAR)
        if o["sm"] & 2:
            def mf(p):
                for tt in range(2):
                    a("v_smfmac_f32_16x16x64_bf16 %s, v[8:11], %s, v%d" % (vr(DD + 8 * p + 4 * tt, 4), vr(WD + 16 * p + 8 * tt, 8), DU))

            def out(p):
                self.smout(DD + 8 * p)
                self.pack24(B + 24 + 4 * p, DD + 8 * p)
                a("buffer_store_dwordx4 %s, v%d, s[%d:%d], s%d offen %ssc1" % (vr(B + 24 + 4 * p, 4), VCS, R_WS, R_WS + 3, [T0 + 3, S_E0, S_E1][p], "sc0 " if o["s01"] & 2 else ""))
            a("s_waitcnt lgkmcnt(0)")
            mf(0)
            mf(1)
            a.lines.append("    s_cbranch_scc0 .Lbc_three")
            out(0)
            out(1)
            self.stamp(4, 2)
            a("s_branch .Lexit")
            a.label(".Lbc_three")
            mf(2)
            a("s_nop 3")
            out(0)
            out(1)
            out(2)
            if o["tc"]:
                a("s_cmp_eq_u32 s3, 0")
                a("s_cselect_b64 exec, 1, 0")
                a("buffer_store_dword v%d, v%d, s[%d:%d], s%d offen" % (B + 27, VV, R_WS, R_WS + 3, P_K))
                a("s_mov_b64 exec, -1")
            self.stamp(4, 2)
            return
        a("ds_read_b128 v[12:15], v%d offset:64" % VAR)
        if o["mo"] & 2:
            def mf(p, ks):
                for tt in range(2):
                    d = B + 8 * p + 4 * tt
                    self.mfma(d, WD + 16 * p + 8 * ks + 4 * tt, 8 + 4 * ks, None if ks == 0 else d)

            def out(p):
                self.sel8(B + 8 * p, B + 8 * p + 4)
                self.pack24(B + 24 + 4 * p, B + 8 * p)
                a("buffer_store_dwordx4 %s, v%d, s[%d:%d], s%d offen sc1" % (vr(B + 24 + 4 * p, 4), VCS, R_WS, R_WS + 3, [T0 + 3, S_E0, S_E1][p]))
            assert not dry
            a("s_waitcnt lgkmcnt(1)")
            mf(0, 0)
            a("s_waitcnt lgkmcnt(0)")
            mf(0, 1)
            mf(1, 0)
            mf(1, 1)
            a.lines.append("    s_cbranch_scc0 .Lbc_three")
            out(0)
            out(1)
            self.stamp(4, 2)
            a("s_branch .Lexit")
            a.label(".Lbc_three")
            mf(2, 0)
            mf(2, 1)
            out(0)
            out(1)
            out(2)
            self.stamp(4, 2)
            return
        for ks in range(2):
            a("s_waitcnt lgkmcnt(%d)" % (1 - ks))
            for p in range(3):
                for tt in range(2):
                    d = B + 8 * p + 4 * tt
                    self.mfma(d, WD + 16 * p + 8 * ks + 4 * tt, 8 + 4 * ks, None if ks == 0 else d)
        if dry:
            a("s_cmp_lg_u32 s%d, 0" % S_DRY)
        for p in range(3):
            self.sel8(B + 8 * p, B + 8 * p + 4)
            self.pack24(B + 24 + 4 * p, B + 8 * p)
            if dry:
                a("s_cbranch_scc1 %s" % (".Lbc_ns%d" % p if p < 2 else ".Lbc_again"))
            if p == 2:
                a("s_cmp_ge_u32 s3, 2")
                a("s_cbranch_scc1 .Lbc_nost3")
            a("buffer_store_dwordx4 %s, v%d, s[%d:%d], s%d offen sc1" % (vr(B + 24 + 4 * p, 4), VCS, R_WS, R_WS + 3, [T0 + 3, S_E0, S_E1][p]))
            for c in range(1, o["pk2r"] if o["cp2"] else 1):
                sx = [T0 + 3, S_E0, S_E1][p]
                a("s_add_u32 s%d, s%d, 0x%x" % (sx, sx, FAST))
                a("buffer_store_dwordx4 %s, v%d, s[%d:%d], s%d offen sc1" % (vr(B + 24 + 4 * p, 4), VCS, R_WS, R_WS + 3, sx))
            if dry and p < 2:
                a.label(".Lbc_ns%d" % p)
        a.label(".Lbc_nost3")
        self.stamp(4, 2)

    def epilogue(self):
        a = self.a
        a.label(".Lexit")
        self.stamp(11)
        if self.o["dirty"]:
            a("s_lshl3_add_u32 s%d, s2, s3" % T0)
            a("s_mul_i32 s%d, s%d, %d" % (T0, T0, 1024 * self.o["dirty"]))
            a("s_add_u32 s%d, s%d, 0x%x" % (T0, T0, STAMP_OFF))
            a("s_mov_b64 exec, -1")
            a("v_lshlrev_b32 v4, 4, v0")
            for i in range(self.o["dirty"]):
                a("buffer_store_dwordx4 v[8:11], v4, s[%d:%d], s%d offen offset:%d" % (R_WS, R_WS + 3, T0, 1024 * (i & 3)))
                if i & 3 == 3:
                    a("s_add_u32 s%d, s%d, 4096" % (T0, T0))
        if self.o["fixend"]:
            a("s_mov_b32 s%d, 4000" % (T0 + 2))
            a.label(".Lfix")
            a("s_memrealtime s[%d:%d]" % (T0, T0 + 1))
            a("s_waitcnt lgkmcnt(0)")
            a("s_sub_u32 s%d, s%d, s%d" % (T0, T0, S_STAMP))
            a("s_cmp_ge_u32 s%d, %d" % (T0, self.o["fixend"]))
            a("s_cbranch_scc1 .Lend")
            a("s_sleep 1")
            a("s_sub_u32 s%d, s%d, 1" % (T0 + 2, T0 + 2))
            a("s_cmp_lg_u32 s%d, 0" % (T0 + 2))
            a("s_cbranch_scc1 .Lfix")
            a("s_branch .Lend")
        if self.o["stamps"] and self.o["dbgs"]:
            for _ in range(8):
                a("s_sleep 64")
            a.srd(R_A, P_DBG, 256)
            a("v_mov_b32 v4, 0")
            a("s_mov_b64 exec, 1")
            a("s_waitcnt lgkmcnt(0)")
            for i in range(NS):
                a("v_mov_b32 v6, s%d" % (S_STAMP + 2 * i))
                a("buffer_atomic_umax v6, v4, s[%d:%d], 0 offen offset:%d" % (R_A, R_A + 3, 4 * i))
                a("s_nop 1")
            a("s_not_b32 s%d, s%d" % (T0, S_STAMP))
            a("v_mov_b32 v6, s%d" % T0)
            a("buffer_atomic_umax v6, v4, s[%d:%d], 0 offen offset:48" % (R_A, R_A + 3))
            a("s_getreg_b32 s%d, hwreg(HW_REG_XCC_ID)" % (T0 + 3))
            a("s_and_b32 s%d, s%d, 15" % (T0 + 3, T0 + 3))
            a("s_and_b32 s%d, s2, 7" % (T0 + 2))
            a("s_lshl_b32 s%d, 1, s%d" % (T0 + 3, T0 + 3))
            a("s_lshr_b32 s%d, s%d, 2" % (T0 + 1, T0 + 2))
            a("s_and_b32 s%d, s%d, 3" % (T0 + 2, T0 + 2))
            a("s_lshl_b32 s%d, s%d, 3" % (T0 + 2, T0 + 2))
            a("s_lshl_b32 s%d, s%d, s%d" % (T0 + 3, T0 + 3, T0 + 2))
            a("s_lshl_b32 s%d, s%d, 2" % (T0 + 1, T0 + 1))
            a("v_mov_b32 v6, s%d" % (T0 + 3))
            a("buffer_atomic_or v6, v4, s[%d:%d], s%d offen offset:52" % (R_A, R_A + 3, T0 + 1))
            a("s_sub_u32 s%d, s%d, s%d" % (T0, S_STAMP + 20, S_STAMP))
            a("v_mov_b32 v6, s%d" % T0)
            a("buffer_atomic_add v6, v4, s[%d:%d], 0 offen offset:60" % (R_A, R_A + 3))
        elif self.o["stamps"]:
            for _ in range(8):
                a("s_sleep 64")
            a("s_lshl3_add_u32 s%d, s2, s3" % T0)
            a("s_mul_i32 s%d, s%d, %d" % (T0, T0, NS * 8))
            a("s_add_u32 s%d, s%d, 0x%x" % (T0, T0, STAMP_OFF))
            a("v_mov_b32 v4, 0")
            a("s_mov_b64 exec, 1")
            a("s_waitcnt lgkmcnt(0)")
            for i in range(NS):
                a("v_mov_b32 v6, s%d" % (S_STAMP + 2 * i))
                a("v_mov_b32 v7, s%d" % (S_STAMP + 2 * i + 1))
                a("buffer_store_dwordx2 v[6:7], v4, s[%d:%d], s%d offen offset:%d" % (R_WS, R_WS + 3, T0, 8 * i))
                a("s_nop 1")
            a("s_getreg_b32 s%d, hwreg(HW_REG_HW_ID)" % (T0 + 2))
            a("s_getreg_b32 s%d, hwreg(HW_REG_XCC_ID)" % (T0 + 3))
            a("s_lshl3_add_u32 s%d, s2, s3" % T0)
            a("s_lshl_b32 s%d, s%d, 3" % (T0, T0))
            a("s_add_u32 s%d, s%d, 0x%x" % (T0, T0, STAMP_OFF + 0x100000))
            a("v_mov_b32 v6, s%d" % (T0 + 2))
            a("v_mov_b32 v7, s%d" % (T0 + 3))
            a("buffer_store_dwordx2 v[6:7], v4, s[%d:%d], s%d offen" % (R_WS, R_WS + 3, T0))
        a.label(".Lend")

    def build(self):
        self.prologue()
        self.nclass()
        self.mclass()
        self.bcclass()
        self.epilogue()
        wrap = lambda body: single_kernel_file(body, 256, 512, LDS_SIZE + (1280 if self.o["oa"] else 768 if self.o["qsh"] else 256 if self.o["mlc"] else 0), 256, page=self.o['page'])
        if self.sites:
            import stubs
            tracks = [(None, ".La_early", True, ["q0"]), (".La_early", ".Ln_att", False, ["a0"]), (".Ln_att", ".Lm", True, ["n1"]),
                      (".Lm", ".Le_done", False, ["m0"]), (".Le_done", ".Lbc", True, ["m1", "m2"]), (".Lbc", ".Lexit", False, ["b0", "b1", "b2"])]
            self.a.lines, rep, missing, used = stubs.plan(self.a.lines, self.sites, tracks, wrap)
            if self.o["twv"]:
                for r in rep:
                    print("stub %s %d at %x late %d" % r)
                print("missing", [(m, hex(c)) for m, c in missing], "used", used, "sites", self.sites)
        return wrap(self.a.text())


if __name__ == "__main__":
    out = sys.argv[1]
    kw = {}
    for x in sys.argv[2:]:
        k, v = x.split("=")
        kw[k] = int(v) if v.lstrip("-").isdigit() else v
    open(out, "w").write(Gen(**kw).build())
```
